```python
import torch

def _softmax(x, axis=-1):
    return torch.softmax(x, dim=axis)
def _gelu(x):
    return torch.nn.functional.gelu(x, approximate="tanh")
def _silu(x):
    return torch.nn.functional.silu(x)
def _sigmoid(x):
    return torch.sigmoid(x)
def _layernorm(x, axis=-1, eps=1e-5):
    m = x.mean(dim=axis, keepdim=True)
    v = x.var(dim=axis, keepdim=True, unbiased=False)
    return (x - m) / torch.sqrt(v + eps)
def _scatter_add(tgt, idx, src, axis=0):
    return tgt.clone().index_add_(axis, idx, src)
def _segment_sum(src, seg, n):
    out = torch.zeros((n,) + src.shape[1:], dtype=src.dtype)
    return out.index_add_(0, seg, src)
def _pad(x, pw):
    flat = tuple(v for pair in reversed(pw) for v in pair)
    return torch.nn.functional.pad(x, flat)

kernel_name = 'gated_mix__linear_kernel_hedgehog__glu_gated_swiglu__prompt'

def setup_inputs():

    _w = (lambda a: (lambda t: t.to(torch.bfloat16) if t.is_floating_point() else t)(torch.as_tensor(a)))
    def _A_setup():
        B, S, D, H = 1, 2048, 512, 32
        Dh = D // H
        return {
            "x": _w((lambda *s: torch.randn(*s, dtype=torch.bfloat16) * 0.05)(B, S, D)),
            "wqkv": _w((lambda *s: torch.randn(*s, dtype=torch.bfloat16) * 0.8)(D, 3 * D)),
            "w_phi": _w((lambda *s: torch.randn(*s, dtype=torch.bfloat16) * 0.8)(H, Dh, Dh) * (Dh ** -0.5)),
            "wo": _w((lambda *s: torch.randn(*s, dtype=torch.bfloat16) * 0.05)(D, D)),
        }
    _A_in = _A_setup()

    def _B_setup():
        B, S, D, F = 1, 2048, 512, 1792
        return {
            "x": _w((lambda *s: torch.randn(*s, dtype=torch.bfloat16) * 0.05)(B, S, D)),
            "w1": _w((lambda *s: torch.randn(*s, dtype=torch.bfloat16) * 1.6)(D, F) * (2.0 / D) ** 0.5),
            "w3": _w((lambda *s: torch.randn(*s, dtype=torch.bfloat16) * 1.6)(D, F) * (2.0 / D) ** 0.5),
            "w2": _w((lambda *s: torch.randn(*s, dtype=torch.bfloat16) * 1.6)(F, D) * (2.0 / F) ** 0.5),
        }
    _B_in = _B_setup()

    return {
        "A_x": _A_in["x"],
        "A_wqkv": _A_in["wqkv"],
        "A_w_phi": _A_in["w_phi"],
        "A_wo": _A_in["wo"],
        "B_x": _B_in["x"],
        "B_w1": _B_in["w1"],
        "B_w3": _B_in["w3"],
        "B_w2": _B_in["w2"],
        "gate_w": _w((lambda *s: torch.randn(*s, dtype=torch.bfloat16) * 0.05)(512) * 16.0),
    }

def reference(A_x, A_wqkv, A_w_phi, A_wo, B_x, B_w1, B_w3, B_w2, gate_w):
    def _A_ref(x, wqkv, w_phi, wo):
        B, S, D = x.shape
        H = 32; Dh = D // H
        qkv = (lambda x, *d: x.permute(*d))((x @ wqkv).reshape(B, S, 3, H, Dh), 2, 0, 3, 1, 4)
        q, k, v = qkv[0], qkv[1], qkv[2]
        pq = torch.einsum("bhsd,hdf->bhsf", q, w_phi)
        pk = torch.einsum("bhsd,hdf->bhsf", k, w_phi)
        phi_q = torch.concatenate([_softmax(pq, axis=-1), _softmax(-pq, axis=-1)], axis=-1)
        phi_k = torch.concatenate([_softmax(pk, axis=-1), _softmax(-pk, axis=-1)], axis=-1)
        kv = torch.einsum("bhsf,bhsd->bhfd", phi_k, v)
        z  = torch.einsum("bhsf->bhf", phi_k)
        num = torch.einsum("bhqf,bhfd->bhqd", phi_q, kv)
        den = torch.einsum("bhqf,bhf->bhq", phi_q, z)[..., None] + 1e-6
        o = num / den
        return (lambda x, *d: x.permute(*d))(o, 0, 2, 1, 3).reshape(B, S, D) @ wo

    def _B_ref(x, w1, w3, w2):
        gate = torch.einsum("bsd,df->bsf", x, w1)
        up = torch.einsum("bsd,df->bsf", x, w3)
        h = _silu(gate) * up
        out = torch.einsum("bsf,fd->bsd", h, w2)
        return out

    x = A_x
    g = _sigmoid((x * gate_w).sum(-1, keepdims=True))
    a = _A_ref(x, A_wqkv, A_w_phi, A_wo)
    b = _B_ref(x, B_w1, B_w3, B_w2)
    return g * a + (1 - g) * b
```

```python
import re

def R(kind, lo, n=1):
    return (kind, lo, n)
def V(lo, n=1): return ('v', lo, n)
def Ag(lo, n=1): return ('a', lo, n)
def S(lo, n=1): return ('s', lo, n)
def rtxt(r):
    if isinstance(r, str): return r
    if isinstance(r, (int,)): return str(r)
    if isinstance(r, float): return repr(r)
    k, lo, n = r
    return f"{k}{lo}" if n == 1 else f"{k}[{lo}:{lo+n-1}]"
def rset(r):
    if isinstance(r, tuple):
        k, lo, n = r
        return {(k, lo+i) for i in range(n)}
    if isinstance(r, str):
        s = r.strip()
        m = re.fullmatch(r"-?(?:abs\()?([vas])(\d+)\)?", s)
        if m: return {(m.group(1), int(m.group(2)))}
        m = re.fullmatch(r"-?([vas])\[(\d+):(\d+)\]", s)
        if m: return {(m.group(1), i) for i in range(int(m.group(2)), int(m.group(3))+1)}
        if s == 'vcc': return {('s', 'vcc')}
        if s in ('exec','exec_lo','exec_hi'): return {('s', 'exec')}
        if s == 'm0': return {('s', 'm0')}
    return set()

TRANS = ('v_exp_f32','v_log_f32','v_rcp_f32','v_rsq_f32','v_sqrt_f32','v_sin_f32','v_cos_f32')

class Ins:
    __slots__ = ('txt','kind','rd','wr','passes','op','srcc','tag')
    def __init__(self, txt, kind, rd=(), wr=(), passes=0, op='', srcc=(), tag=None):
        self.txt=txt; self.kind=kind; self.rd=set(rd); self.wr=set(wr); self.passes=passes; self.op=op; self.srcc=set(srcc); self.tag=tag

class Asm:
    def __init__(self):
        self.out = []
        self.hist = []
        self.lgkm = []
        self.vm = []
        self.smem_pending = set()
        self.ninst = 0
        self.check = True
    def raw(self, txt): self.out.append(txt)
    def comment(self, t): self.out.append(f"    ; {t}")
    def label(self, name):
        self.out.append(f"{name}:")
    def _wait_for_regs(self, regs):
        idx = -1
        for i, (d, t) in enumerate(self.lgkm):
            if d & regs: idx = i
        if self.smem_pending & regs:
            self.wait_lgkm(0)
        elif idx >= 0:
            self.wait_lgkm(len(self.lgkm) - 1 - idx)
        idx = -1
        for i, (d, t) in enumerate(self.vm):
            if d & regs: idx = i
        if idx >= 0:
            self.wait_vm(len(self.vm) - 1 - idx)
    def wait_lgkm(self, n):
        if self.smem_pending:
            n = 0
        if n >= len(self.lgkm) and not self.smem_pending: return
        assert n <= 15
        self._emit(Ins(f"s_waitcnt lgkmcnt({n})", 'wait'))
        self.lgkm = self.lgkm[len(self.lgkm)-n:] if n > 0 else []
        if n == 0: self.smem_pending = set()
    def wait_vm(self, n):
        if n >= len(self.vm): return
        assert n <= 63, n
        self._emit(Ins(f"s_waitcnt vmcnt({n})", 'wait'))
        self.vm = self.vm[len(self.vm)-n:] if n > 0 else []
    def wait_vm_tag(self, tag):
        tags = tag if isinstance(tag, (list, set, tuple)) and not isinstance(tag, str) else [tag]
        idx = -1
        for i, (d, t) in enumerate(self.vm):
            if t in tags: idx = i
        if idx >= 0: self.wait_vm(len(self.vm) - 1 - idx)
    def wait_lgkm_tag(self, tag):
        tags = tag if isinstance(tag, (list, set)) else [tag]
        idx = -1
        for i, (d, t) in enumerate(self.lgkm):
            if t in tags: idx = i
        if idx >= 0: self.wait_lgkm(len(self.lgkm) - 1 - idx)
    def force_wait(self, vm=None, lgkm=None):
        p = []
        if vm is not None:
            p.append(f"vmcnt({vm})"); self.vm = self.vm[len(self.vm)-vm:] if vm > 0 else []
        if lgkm is not None:
            p.append(f"lgkmcnt({lgkm})"); self.lgkm = self.lgkm[len(self.lgkm)-lgkm:] if lgkm > 0 else []
            if lgkm == 0: self.smem_pending = set()
        self._emit(Ins("s_waitcnt " + " ".join(p), 'wait'))
    def _need(self, ins):
        need = 0
        dist = 0
        for p in reversed(self.hist):
            req = 0
            k = p.kind
            touch = ins.rd | ins.wr
            if k == 'valu' or k == 'trans':
                if ins.kind == 'mfma' and (p.wr & ins.rd): req = max(req, 2)
                if k == 'trans' and ins.kind in ('valu','mfma') and (p.wr & ins.rd): req = max(req, 1)
                if ins.op.startswith('v_permlane') and (p.wr & ins.rd): req = max(req, 2)
                if ins.op in ('v_readlane_b32','v_readfirstlane_b32') and any(r[0] in 'va' for r in p.wr & ins.rd): req = max(req, 1)
                if 'dpp' in ins.txt and ins.kind == 'valu' and (p.wr & ins.rd): req = max(req, 2)
                sw = {r for r in p.wr if r[0] == 's'}
                if sw:
                    if ins.kind in ('valu','trans') and (sw & ins.rd): req = max(req, 2)
                    if ins.kind in ('vmem','dma') and (sw & ins.rd): req = max(req, 5)
                    if ins.op in ('v_readlane_b32','v_writelane_b32') and (sw & ins.rd): req = max(req, 4)
                    if ins.kind == 'salu' and (sw & ins.rd): req = max(req, 1)
                    if ('s','exec') in sw and ins.kind == 'mfma': req = max(req, 4)
                    if ('s','exec') in sw and (ins.op.startswith('v_permlane') or ins.op in ('v_readlane_b32','v_readfirstlane_b32')): req = max(req, 4)
            if p.op.startswith('v_dot') and (p.wr & (ins.rd | ins.wr)) and not (ins.op == p.op and ins.txt.split(',')[-1].strip() == p.txt.split()[1].rstrip(',') and sum(1 for x in ins.txt.replace(',', ' ').split()[2:] if x == p.txt.split()[1].rstrip(',')) == 1):
                req = max(req, 3)
            if k == 'mfma':
                big = p.passes
                if p.wr & touch:
                    if ins.kind == 'mfma':
                        exact = (ins.srcc == p.wr and ins.passes == p.passes and not (p.wr & (ins.rd - ins.srcc)))
                        if exact: req = max(req, 2 if big == 2 else 0)
                        elif p.wr & (ins.rd - ins.srcc): req = max(req, {2:5,4:8,8:12,16:20}[big])
                        else: req = max(req, {2:4,4:6,8:10,16:18}[big]) if (p.wr & ins.srcc) else max(req, {2:5,4:8,8:12,16:20}[big])
                    else:
                        req = max(req, {2:5,4:8,8:12,16:20}[big])
                if ins.kind in ('valu','trans') and (p.srcc & ins.wr): req = max(req, {2:1,4:3,8:7,16:15}[big])
                if ins.kind in ('ds','vmem') and (p.srcc & ins.wr): req = max(req, {2:1,4:3,8:7,16:15}[big])
            if k == 'salu' and ('s','m0') in p.wr and ins.kind == 'dma': req = max(req, 1)
            if k == 'vmem' and p.op.endswith('x4') and 'store' in p.op and ins.kind in ('valu','trans','mfma','ds','vmem') and (p.rd & ins.wr & {r for r in p.rd if r[0] in 'va'}):
                req = max(req, 2)
            if k == 'vmem' and p.op.endswith('x3') and 'store' in p.op and (p.rd & ins.wr): req = max(req, 2)
            need = max(need, req - dist)
            dist += p.passes if p.kind == 'nop' else 1
            if dist >= 20: break
        return need
    def _emit(self, ins):
        self.out.append("    " + ins.txt)
        self.hist.append(ins)
        if len(self.hist) > 32: self.hist.pop(0)
        self.ninst += 1
    def nop(self, n):
        while n > 0:
            m = min(n, 16)
            i = Ins(f"s_nop {m-1}", 'nop', passes=m); self._emit(i); n -= m
    def emit(self, ins):
        regs = ins.rd | ins.wr
        self._wait_for_regs(regs)
        n = self._need(ins)
        if n > 0: self.nop(n)
        self._emit(ins)
    def flush_hist(self):
        self.nop(0)
    def valu(self, op, dst, *src, extra="", wr_extra=(), rd_dst=False):
        rd = set()
        for s in src: rd |= rset(s)
        wr = rset(dst)
        for w in wr_extra: wr |= rset(w)
        if rd_dst or op.startswith('v_fmac') or op.startswith('v_permlane') or op.startswith('v_writelane'): rd |= rset(dst)
        if op.startswith('v_permlane') and 'swap' in op: wr |= rset(src[0])
        if op.startswith('v_cmpx'): wr |= {('s','exec')}
        base = op.replace('_e32','').replace('_e64','')
        kind = 'trans' if base in TRANS else 'valu'
        txt = f"{op} {rtxt(dst)}" + "".join(", " + rtxt(s) for s in src) + (" " + extra if extra else "")
        self.emit(Ins(txt, kind, rd, wr, op=base))
    def salu(self, op, dst, *src, extra=""):
        rd = set()
        for s in src: rd |= rset(s)
        wr = rset(dst) if dst is not None else set()
        if op.startswith('s_cmp') or op.startswith('s_bitcmp'):
            rd |= rset(dst); wr = set()
        if 'saveexec' in op: wr |= {('s','exec')}; rd |= {('s','exec')}
        parts = ([rtxt(dst)] if dst is not None else []) + [rtxt(s) for s in src]
        self.emit(Ins(f"{op} " + ", ".join(parts) + (" " + extra if extra else ""), 'salu', rd, wr, op=op))
    def sload(self, op, dst, base, off):
        self.emit(Ins(f"{op} {rtxt(dst)}, {rtxt(base)}, {off}", 'smem', rset(base), rset(dst), op=op))
        self.smem_pending |= rset(dst)
    def mfma16(self, d, a, b, c=None):
        c = d if c is None else c
        cs = rset(c)
        self.emit(Ins(f"v_mfma_f32_16x16x32_bf16 {rtxt(d)}, {rtxt(a)}, {rtxt(b)}, {rtxt(c)}", 'mfma', rset(a)|rset(b)|cs, rset(d), passes=4, op='mfma16', srcc=cs))
    def mfma32(self, d, a, b, c=None):
        c = d if c is None else c
        cs = rset(c)
        self.emit(Ins(f"v_mfma_f32_32x32x16_bf16 {rtxt(d)}, {rtxt(a)}, {rtxt(b)}, {rtxt(c)}", 'mfma', rset(a)|rset(b)|cs, rset(d), passes=8, op='mfma32', srcc=cs))
    def _lgkm_room(self):
        if len(self.lgkm) >= 15: self.wait_lgkm(14)
    def ds_read(self, op, dst, addr, off=0, tag=None):
        self._lgkm_room()
        assert 0 <= off < 65536, off
        self.emit(Ins(f"{op} {rtxt(dst)}, {rtxt(addr)}" + (f" offset:{off}" if off else ""), 'ds', rset(addr), rset(dst), op=op))
        self.lgkm.append((rset(dst), tag))
    def ds_write(self, op, addr, src, off=0, tag=None):
        self._lgkm_room()
        assert 0 <= off < 65536, off
        self.emit(Ins(f"{op} {rtxt(addr)}, {rtxt(src)}" + (f" offset:{off}" if off else ""), 'ds', rset(addr)|rset(src), set(), op=op))
        self.lgkm.append((set(), tag))
    def _vm_room(self):
        if len(self.vm) >= 63: self.wait_vm(62)
    def buf_load(self, op, dst, voff, srd, soff=0, off=0, flags="", tag=None):
        self._vm_room()
        assert 0 <= off < 4096
        vt = rtxt(voff) if voff is not None else "off"
        txt = f"{op} {rtxt(dst)}, {vt}, {rtxt(srd)}, {rtxt(soff)}" + (" offen" if voff is not None else "") + (f" offset:{off}" if off else "") + (" " + flags if flags else "")
        self.emit(Ins(txt, 'vmem', rset(voff)|rset(srd)|rset(soff), rset(dst), op=op))
        self.vm.append((rset(dst), tag))
    def buf_store(self, op, src, voff, srd, soff=0, off=0, flags="", tag=None):
        self._vm_room()
        assert 0 <= off < 4096
        vt = rtxt(voff) if voff is not None else "off"
        txt = f"{op} {rtxt(src)}, {vt}, {rtxt(srd)}, {rtxt(soff)}" + (" offen" if voff is not None else "") + (f" offset:{off}" if off else "") + (" " + flags if flags else "")
        self.emit(Ins(txt, 'vmem', rset(src)|rset(voff)|rset(srd)|rset(soff), set(), op=op))
        self.vm.append((set(), tag))
    def dma(self, voff, srd, soff=0, off=0, flags="", tag=None, op="buffer_load_dwordx4"):
        self._vm_room()
        assert 0 <= off < 4096
        txt = f"{op} {rtxt(voff)}, {rtxt(srd)}, {rtxt(soff)} offen" + (f" offset:{off}" if off else "") + " lds" + (" " + flags if flags else "")
        self.emit(Ins(txt, 'dma', rset(voff)|rset(srd)|rset(soff)|{('s','m0'),('s','exec')}, set(), op=op))
        self.vm.append((set(), tag))
    def gload(self, op, dst, voff, sbase, off=0, flags="", tag=None):
        self._vm_room()
        txt = f"{op} {rtxt(dst)}, {rtxt(voff)}, {rtxt(sbase)}" + (f" offset:{off}" if off else "") + (" " + flags if flags else "")
        self.emit(Ins(txt, 'vmem', rset(voff)|rset(sbase), rset(dst), op=op))
        self.vm.append((rset(dst), tag))
    def gstore(self, op, voff, src, sbase, off=0, flags="", tag=None):
        self._vm_room()
        txt = f"{op} {rtxt(voff)}, {rtxt(src)}, {rtxt(sbase)}" + (f" offset:{off}" if off else "") + (" " + flags if flags else "")
        self.emit(Ins(txt, 'vmem', rset(voff)|rset(sbase)|rset(src), set(), op=op))
        self.vm.append((set(), tag))
    def barrier(self):
        self._emit(Ins("s_barrier", 'misc'))
    def misc(self, txt, rd=(), wr=()):
        r = set(); w = set()
        for x in rd: r |= rset(x)
        for x in wr: w |= rset(x)
        self.emit(Ins(txt, 'misc', r, w))
    def branch(self, txt):
        self._emit(Ins(txt, 'misc'))
    def text(self): return "\n".join(self.out)

KD = """.section .rodata,"a"
.p2align 6
.amdhsa_kernel {name}
  .amdhsa_next_free_vgpr {nvgpr}
  .amdhsa_next_free_sgpr 102
  .amdhsa_accum_offset {accum}
  .amdhsa_group_segment_fixed_size 0
  .amdhsa_kernarg_size 96
  .amdhsa_user_sgpr_count 2
  .amdhsa_user_sgpr_kernarg_segment_ptr 1
  .amdhsa_system_sgpr_workgroup_id_x 1
  .amdhsa_float_denorm_mode_32 3
.end_amdhsa_kernel
"""
def kernel_head(name):
    return f".globl {name}\n.p2align 8\n.type {name},@function\n{name}:"
```

```python
from asmlib import *
import struct
LOG2E = 1.4426950408889634
def f32bits(x): return struct.unpack('<I', struct.pack('<f', x))[0]

WS_H = 0
WS_O = 8 << 20
WS_G = 11 << 20
WS_KV = 12 << 20
WS_FH = 13 << 20
WS_FO = WS_FH + 4096
WS_FK = WS_FH + 8192
WS_SIZE = 14 << 20
WS_STAMP = 15 << 20

S_XSRD = 8; S_WSRD = 12; S_WS = 16; S_W2 = 20; S_WO = 24; S_OUT = 28; S_AUX = 32; S_DBG = 36
KA = 40
P_AX, P_WQKV, P_WPHI, P_WO, P_BX, P_W1, P_W3, P_W2, P_GW, P_OUT, P_DBG, P_WSP = [KA + 2*i for i in range(12)]
S_WAVE = 64; S_RB = 65; S_CG = 66; S_TB = 67; S_CB = 68
S_XM0 = 69; S_WM0 = 70; S_XOFF = 71; S_WOFF = 72; S_T0 = 73; S_T1 = 74; S_T2 = 75; S_T3 = 76
S_FLAG = 77
S_C0 = 78
S_M = 80
S_M2 = 82
S_P2M0 = 4
S_SPIN = 5
S_HP = 6; S_RH = 7
S_STAMP = 84

V_LANE = 254
V_P2W = 240
V_ONE = 253

class Stamps:
    def __init__(self, a, on): self.a = a; self.on = on
    def __call__(self, k):
        if self.on: self.a.misc(f"s_memrealtime s[{S_STAMP+2*k}:{S_STAMP+2*k+1}]")

def srd(a, r, base, nbytes):
    a.salu('s_mov_b32', S(r), S(base)); a.salu('s_mov_b32', S(r+1), S(base+1))
    a.salu('s_mov_b32', S(r+2), nbytes); a.salu('s_mov_b32', S(r+3), '0x20000')

def split_off(base_reg, off):
    return (V(base_reg + (off >> 16)), off & 0xffff)

def set_exec(a, lo, hi):
    a.salu('s_mov_b32', 'exec_lo', lo); a.salu('s_mov_b32', 'exec_hi', hi)

_lab = [0]
def newlabel(p):
    _lab[0] += 1
    return f"L_{p}_{_lab[0]}"

def one_lane_store(a, voff_s, value, tag):
    skip = newlabel("skip")
    a.salu('s_cmp_lg_u32', S(S_WAVE), 0); a.branch(f"s_cbranch_scc1 {skip}")
    a.valu('v_mov_b32', V(252), value)
    set_exec(a, 1, 0)
    a.buf_store('buffer_store_dword', V(252), None, S(S_WS,4), S(voff_s), flags='sc1', tag=tag)
    a.vm.pop()
    set_exec(a, -1, -1)
    a.label(skip)
    a.uncounted = True

def spin_until(a, load_fn, dst, ref, mask_s, name, preloaded=False):
    top = newlabel(name); done = newlabel(name + "_ok")
    saved = None
    if preloaded:
        a.valu('v_cmp_eq_u32', 'vcc', ref, dst)
        a.salu('s_and_b64', S(S_M2,2), 'vcc', S(mask_s,2))
        a.salu('s_cmp_eq_u64', S(S_M2,2), S(mask_s,2)); a.branch(f"s_cbranch_scc1 {done}")
        saved = list(a.vm)
    a.salu('s_mov_b32', S(S_SPIN), 0)
    a.label(top)
    load_fn()
    a.force_wait(vm=0)
    a.valu('v_cmp_eq_u32', 'vcc', ref, dst)
    a.salu('s_and_b64', S(S_M2,2), 'vcc', S(mask_s,2))
    a.salu('s_cmp_eq_u64', S(S_M2,2), S(mask_s,2)); a.branch(f"s_cbranch_scc1 {done}")
    a.salu('s_add_u32', S(S_SPIN), S(S_SPIN), 1)
    a.salu('s_cmp_lt_u32', S(S_SPIN), 1 << 21); a.branch(f"s_cbranch_scc1 {top}")
    a.label(done)
    if saved is not None: a.vm = saved
```

```python
from defs import *

NT = 11; XSLOT = 176*128; NXS = 3; WSLOT = 16384; NWS = 5; XBASE = 0; WBASE = 3*176*128
ACC = 0; VX_DMA = 176; VW_DMA = 182; VX_RD = 186; VW_RD = 190; VH_ST = 194; VT = 196
AX = 0; AW = 32

def acc(i, n): return V(ACC + (i*4 + n)*4, 4)

def setup_dma(a):
    t0, t1, t2, t3, lane = V(VT), V(VT+1), V(VT+2), V(VT+3), V(V_LANE)
    a.salu('s_mul_i32', S(S_T0), S(S_WAVE), 44)
    a.salu('s_mul_i32', S(S_T1), S(S_RB), 176)
    a.valu('v_lshrrev_b32', t0, 3, lane)
    a.valu('v_add_u32', t0, S(S_T0), t0)
    a.valu('v_and_b32', t1, 7, lane)
    for i in range(6):
        a.valu('v_add_u32', t2, 8*i, t0)
        a.valu('v_bfe_u32', t3, t2, 1, 3)
        a.valu('v_xor_b32', t3, t3, t1)
        a.valu('v_add_u32', t2, S(S_T1), t2)
        a.valu('v_lshlrev_b32', t2, 10, t2)
        off = 1024*(i % 4)
        a.valu('v_lshl_add_u32', V(VX_DMA+i), t3, 4, t2)
        if off: a.valu('v_subrev_u32', V(VX_DMA+i), off, V(VX_DMA+i))
    a.salu('s_mul_i32', S(S_XM0), S(S_WAVE), 44*128)
    a.salu('s_and_b32', S(S_T0), S(S_WAVE), 1)
    a.salu('s_lshl_b32', S(S_T0), S(S_T0), 4)
    a.salu('s_lshl_b32', S(S_T1), S(S_CG), 8)
    a.salu('s_mov_b32', S(S_T2), 3584)
    a.valu('v_lshrrev_b32', t0, 4, lane)
    a.valu('v_bfe_u32', t1, lane, 1, 3)
    a.valu('v_xor_b32', t1, t1, t0)
    a.valu('v_and_b32', t2, 1, lane)
    a.valu('v_lshlrev_b32', t2, 4, t2)
    a.valu('v_add_u32', t2, S(S_T1), t2)
    a.valu('v_add_u32', t0, S(S_T0), t0)
    a.valu('v_mul_lo_u32', t0, t0, S(S_T2))
    a.valu('v_add_u32', t0, t0, t2)
    a.valu('v_xor_b32', t3, 4, t1)
    for i in range(4):
        a.valu('v_lshl_add_u32', V(VW_DMA+i), (t3 if (i >> 1) & 1 else t1), 5, t0)
        if i: a.valu('v_add_u32', V(VW_DMA+i), i*(4*3584 - 1024), V(VW_DMA+i))
    a.salu('s_lshl_b32', S(S_WM0), S(S_WAVE), 12)
    a.salu('s_add_u32', S(S_WM0), S(S_WM0), WBASE)

def setup_rd(a):
    t0, t1, t2, t3, lane = V(VT), V(VT+1), V(VT+2), V(VT+3), V(V_LANE)
    a.valu('v_and_b32', t0, 15, lane)
    a.valu('v_lshrrev_b32', t1, 4, lane)
    a.valu('v_lshrrev_b32', t2, 1, t0)
    for ks in range(2):
        a.valu('v_add_u32', t3, 4*ks, t1)
        a.valu('v_xor_b32', t3, t3, t2)
        a.valu('v_lshlrev_b32', t3, 4, t3)
        a.valu('v_lshl_add_u32', V(VX_RD+2*ks), t0, 7, t3)
        a.valu('v_add_u32', V(VX_RD+2*ks+1), 65536, V(VX_RD+2*ks))
    a.valu('v_bfe_u32', t0, lane, 2, 2)
    a.valu('v_lshl_add_u32', t2, t1, 3, t0)
    a.valu('v_lshlrev_b32', t2, 8, t2)
    a.valu('v_and_b32', t3, 3, lane)
    a.valu('v_lshl_add_u32', t2, t3, 3, t2)
    a.valu('v_and_b32', t1, 1, t1)
    a.valu('v_lshl_or_b32', t0, t1, 2, t0)
    a.salu('s_lshl_b32', S(S_T0), S(S_WAVE), 1)
    for ft in range(2):
        a.salu('s_add_u32', S(S_T1), S(S_T0), ft)
        a.valu('v_xor_b32', t3, S(S_T1), t0)
        a.valu('v_lshl_add_u32', t3, t3, 5, t2)
        a.valu('v_add_u32', V(VW_RD+2*ft), WBASE, t3)
        a.valu('v_add_u32', V(VW_RD+2*ft+1), WBASE+65536, t3)
    a.salu('s_mul_i32', S(S_T0), S(S_RB), 11*56)
    a.salu('s_lshl_b32', S(S_T1), S(S_CG), 2)
    a.salu('s_add_u32', S(S_T0), S(S_T0), S(S_T1))
    a.salu('s_add_u32', S(S_T0), S(S_T0), S(S_WAVE))
    a.salu('s_lshl_b32', S(S_T0), S(S_T0), 10)
    a.valu('v_lshlrev_b32', t3, 4, lane)
    a.valu('v_add_u32', V(VH_ST), S(S_T0), t3)
    a.salu('s_mov_b32', S(S_C0), hex(f32bits(-LOG2E)))

def dma_x(a, ch):
    slot = XBASE + (ch % NXS)*XSLOT
    def mk(i):
        def f():
            if i % 4 == 0: a.salu('s_add_u32', 'm0', S(S_XM0), slot + 1024*i)
            if i == 0: a.salu('s_mov_b32', S(S_XOFF), ch*128)
            if i == 5: a.salu('s_mov_b32', 'exec_hi', 0)
            a.dma(V(VX_DMA+i), S(S_XSRD,4), S(S_XOFF), off=1024*(i % 4), tag=('x', ch))
            if i == 5: a.salu('s_mov_b32', 'exec_hi', -1)
        return f
    return [mk(i) for i in range(6)]
def dma_w(a, s):
    slot = (s % NWS)*WSLOT
    def mk(i):
        def f():
            if i == 0:
                a.salu('s_add_u32', 'm0', S(S_WM0), slot)
                a.salu('s_mov_b32', S(S_WOFF), s*32*3584)
            a.dma(V(VW_DMA+i), S(S_WSRD,4), S(S_WOFF), off=1024*i, tag=('w', s))
        return f
    return [mk(i) for i in range(4)]

def wfrag(buf, n): return Ag(AW + buf*16 + n*4, 4)
def read_w(a, s, buf):
    ops = []
    for n in range(4):
        m, ft = n >> 1, n & 1
        for jj in range(2):
            off = (s % NWS)*WSLOT + 8192*m + 1024*jj
            def f(n=n, jj=jj, off=off, ft=ft):
                r, imm = split_off(VW_RD + 2*ft, off)
                a.ds_read('ds_read_b64_tr_b16', Ag(AW + buf*16 + n*4 + 2*jj, 2), r, imm)
            ops.append(f)
    return ops
def read_x(a, s, i, pool):
    off = XBASE + ((s >> 1) % NXS)*XSLOT + 2048*i
    def f():
        r, imm = split_off(VX_RD + 2*(s & 1), off)
        a.ds_read('ds_read_b128', Ag(AX + pool*4, 4), r, imm)
    return f

def epilogue_tile(a, i, tbase):
    ops = []
    for ft in range(2):
        g = acc(i, ft)[1]; u = acc(i, 2+ft)[1]
        e = [tbase + 4*ft + r for r in range(4)]
        for r in (0, 2):
            ops.append(lambda r=r, g=g, e=e: a.valu('v_pk_mul_f32', V(e[r],2), V(g+r,2), S(S_C0,2), extra='op_sel_hi:[1,0]'))
        for r in range(4):
            ops.append(lambda r=r, e=e: a.valu('v_exp_f32', V(e[r]), V(e[r])))
        for r in (0, 2):
            ops.append(lambda r=r, g=g, u=u: a.valu('v_pk_mul_f32', V(u+r,2), V(g+r,2), V(u+r,2)))
        for r in (0, 2):
            ops.append(lambda r=r, e=e: a.valu('v_pk_add_f32', V(e[r],2), V(e[r],2), '1.0', extra='op_sel_hi:[1,0]'))
        for r in range(4):
            ops.append(lambda r=r, e=e: a.valu('v_rcp_f32', V(e[r]), V(e[r])))
        for r in (0, 2):
            ops.append(lambda r=r, e=e, u=u: a.valu('v_pk_mul_f32', V(u+r,2), V(u+r,2), V(e[r],2)))
    o = tbase + 8
    for ft in range(2):
        u = acc(i, 2+ft)[1]
        for r in (0, 2):
            ops.append(lambda r=r, u=u, ft=ft: a.valu('v_cvt_pk_bf16_f32', V(o + 2*ft + r//2), V(u+r), V(u+r+1)))
    return ops, V(o, 4)

def path(a, c, st, common):
    NS = 16; NM = NT*4
    a.salu('s_cmp_ge_u32', S(S_WAVE), 2)
    a.salu('s_cselect_b32', S(S_WSRD), S(P_W3), S(P_W1)); a.salu('s_cselect_b32', S(S_WSRD+1), S(P_W3+1), S(P_W1+1))
    a.salu('s_mov_b32', S(S_WSRD+2), 512*3584); a.salu('s_mov_b32', S(S_WSRD+3), '0x20000')
    srd(a, S_XSRD, P_AX, 2048*1024)
    setup_dma(a)
    a.salu('s_lshl_b32', S(S_FLAG), S(S_RB), 7); a.salu('s_lshl_b32', S(S_T0), S(S_CG), 2)
    a.salu('s_add_u32', S(S_FLAG), S(S_FLAG), S(S_T0)); a.salu('s_add_u32', S(S_FLAG), S(S_FLAG), WS_FH)
    common.clear_flags([S_FLAG])
    q = []
    def free_at(bar): return (bar-1)*NM + c.BAR_AT + 1
    for s in range(NS):
        if s % 2 == 0:
            ch = s//2
            e = -1 if ch < NXS else free_at(2*(ch - NXS) + 2)
            q += [(f, e) for f in dma_x(a, ch)]
        e = -1 if s < NWS else free_at(s - NWS + 1)
        q += [(f, e) for f in dma_w(a, s)]
    for f, e in q[:c.NPRO]: f()
    q = q[c.NPRO:]
    setup_rd(a)
    common.p2_setup()
    a.wait_vm_tag([('x',0),('w',0)])
    a.barrier()
    st(1)
    common.after_first_wait()
    for f in read_w(a, 0, 0): f()
    seq = [(s, i) for s in range(NS) for i in range(NT)]
    for k in range(c.LA): read_x(a, seq[k][0], seq[k][1], k % c.NPOOL)()
    last_dma = -100
    for s in range(NS):
        side = {m: [] for m in range(NM)}
        for i in range(NT):
            k = s*NT + i + c.LA
            if k < len(seq):
                qs, qi = seq[k]
                m = 4*i + 1
                if qs != s: m = max(m, c.BAR_AT + 9 + qi)
                assert m < NM
                side[m].append(read_x(a, qs, qi, k % c.NPOOL))
        if s + 1 < NS:
            def bar(s=s):
                tags = [('w', s+1)]
                if (s+1) % 2 == 0: tags.append(('x', (s+1)//2))
                a.wait_vm_tag(tags)
                a.wait_lgkm(0)
                a.barrier()
            side[c.BAR_AT].insert(0, bar)
            for k, f in enumerate(read_w(a, s+1, (s+1) & 1)):
                side[c.BAR_AT + 1 + k].append(f)
        else:
            def bar():
                a.wait_lgkm(0); a.barrier()
            side[c.BAR_AT].insert(0, bar)
        for m in range(NM):
            g = s*NM + m
            for f in side[m]: f()
            if q and g - last_dma >= c.P and q[0][1] <= g:
                q.pop(0)[0](); last_dma = g
            i, n = m >> 2, m & 3
            k = s*NT + i
            a.mfma16(acc(i, n), wfrag(s & 1, n), Ag(AX + (k % c.NPOOL)*4, 4), 0 if s == 0 else None)
    assert not q
    st(2)
    common.cleared_issue()
    pre = common.p2_dma(range(c.P2PRE_FFN))
    for i in range(NT):
        ops, o = epilogue_tile(a, i, VT + (i & 1)*12)
        n = -(-len(pre) // (NT - i)) if pre else 0
        at = set(int(len(ops)*(k+0.5)/n) for k in range(n)) if n else set()
        for k, f in enumerate(ops):
            if k in at and pre: pre.pop(0)()
            f()
        a.salu('s_mov_b32', S(S_T0), i*56*1024)
        a.buf_store('buffer_store_dwordx4', o, V(VH_ST), S(S_WS,4), S(S_T0), flags='sc1', tag='hst')
    assert not pre
    for f in common.p2_dma(range(c.P2PRE_FFN, c.P2PRE_JOIN)): f()
    st(3)
    common.cleared_check()
    a.wait_vm_tag('hst')
```

```python
from defs import *
NSLOT = 10; NCH = 18
BACC = 0; AACC = 64
AA = 0
AWF = 128
VAO = 128; VWR = 129; VG = 134; VT2 = 140
V_CLR = 251

class Common:
    def __init__(self, a, c): self.a = a; self.c = c
    def clear_flags(self, regs):
        a = self.a
        for r in regs: one_lane_store(a, r, 0, 'clr')
    def after_first_wait(self):
        a = self.a; skip = newlabel("cnt")
        a.salu('s_cmp_lg_u32', S(S_WAVE), 0); a.branch(f"s_cbranch_scc1 {skip}")
        a.valu('v_mov_b32', V(252), 1)
        set_exec(a, 1, 0)
        a.emit(Ins(f"buffer_atomic_add v252, off, s[{S_AUX}:{S_AUX+3}], 0 sc1", 'vmem', rset(V(252))|rset(S(S_AUX,4)), set(), op='atomic'))
        set_exec(a, -1, -1)
        a.label(skip)
    def cleared_load(self):
        self.a.buf_load('buffer_load_dword', V(V_CLR), None, S(S_AUX,4), flags='sc1', tag='clrchk')
    def cleared_issue(self): self.cleared_load()
    def cleared_check(self):
        a = self.a
        a.salu('s_mov_b64', S(S_M,2), 1)
        spin_until(a, self.cleared_load, V(V_CLR), '0x100', S_M, "clr", preloaded=True)
    def p2_setup(self):
        a = self.a; l = V(V_LANE); t0, t1, t2 = V(248), V(249), V(250)
        t0, t1, t2 = V(251), V(252), V(253)
        srd(a, S_W2, P_W2, 1792*1024); srd(a, S_WO, P_WO, 512*1024); srd(a, S_OUT, P_OUT, 2048*1024)
        srd(a, S_AUX, P_DBG, 256)
        a.salu('s_mul_i32', S(S_P2M0), S(S_WAVE), 40960)
        a.valu('v_bfe_u32', t0, l, 1, 2); a.valu('v_lshrrev_b32', t1, 4, l); a.valu('v_xor_b32', t0, t0, t1)
        a.valu('v_lshlrev_b32', t0, 5, t0); a.valu('v_and_b32', t1, 1, l); a.valu('v_lshl_add_u32', t0, t1, 4, t0)
        a.salu('s_lshl_b32', S(S_T0), S(S_CB), 7); a.valu('v_add_u32', t0, S(S_T0), t0)
        a.valu('v_lshrrev_b32', t1, 3, l)
        a.salu('s_mul_i32', S(S_T0), S(S_WAVE), 14*32*1024)
        a.valu('v_lshl_add_u32', t2, t1, 10, t0); a.valu('v_add_u32', V(V_P2W), S(S_T0), t2)
        for i in range(1, 4): a.valu('v_add_u32', V(V_P2W+i), i*(8192 - 1024), V(V_P2W))
        a.valu('v_lshrrev_b32', t2, 2, t1); a.valu('v_lshlrev_b32', t2, 3, t2); a.valu('v_and_b32', t1, 3, t1); a.valu('v_add_u32', t1, t1, t2)
        a.salu('s_mul_i32', S(S_T0), S(S_WAVE), 4*32*1024)
        a.valu('v_lshl_add_u32', t2, t1, 10, t0); a.valu('v_add_u32', V(V_P2W+4), S(S_T0), t2)
        for i in range(1, 4): a.valu('v_add_u32', V(V_P2W+4+i), (16*(i & 1) + 4*(i >> 1) - i)*1024, V(V_P2W+4))
    def p2_dma(self, chunks):
        a = self.a; ops = []
        for ch in chunks:
            for i in range(4):
                def f(ch=ch, i=i):
                    if i == 0:
                        a.salu('s_add_u32', 'm0', S(S_P2M0), (ch % NSLOT)*4096)
                        a.salu('s_mov_b32', S(S_WOFF), (ch if ch < 14 else ch - 14)*32768)
                    if ch < 14: a.dma(V(V_P2W+i), S(S_W2,4), S(S_WOFF), off=1024*i, tag=('p2w', ch))
                    else: a.dma(V(V_P2W+4+i), S(S_WO,4), S(S_WOFF), off=1024*i, tag=('p2w', ch))
                ops.append(f)
        return ops

def bacc(base, tt, ct): return V(base + 16*tt + 4*ct, 4)

def phase2(a, c, st, common):
    l = V(V_LANE); t0, t1, t2, t3 = V(VT2), V(VT2+1), V(VT2+2), V(VT2+3)
    a.lgkm = []; a.hist = []; a.nop(4)
    a.vm = [(set(), ('p2w', ch)) for ch in range(c.P2PRE_JOIN) for i in range(4)]
    a.barrier()
    one_lane_store(a, S_FLAG, 1, 'flag')
    st(8 if c.STAMP8 else 99) if False else None
    rest = common.p2_dma(range(c.P2PRE_JOIN, NSLOT))
    for f in rest: f()
    a.valu('v_lshlrev_b32', V(VAO), 4, l)
    a.valu('v_bfe_u32', t0, l, 2, 2); a.valu('v_lshrrev_b32', t1, 4, l)
    a.valu('v_lshl_add_u32', t2, t1, 2, t0)
    a.valu('v_bfe_u32', t3, t2, 1, 2)
    a.valu('v_lshlrev_b32', t2, 7, t2); a.valu('v_and_b32', t0, 3, l); a.valu('v_lshl_add_u32', t2, t0, 3, t2)
    a.valu('v_add_u32', t2, S(S_P2M0), t2)
    for ct in range(4):
        a.valu('v_xor_b32', t0, ct, t3); a.valu('v_lshl_add_u32', V(VWR+ct), t0, 5, t2)
    a.salu('s_lshl_b32', S(S_T0), S(S_TB), 6)
    a.salu('s_mul_hi_u32', S(S_T1), S(S_T0), hex((2**32 + 175)//176)); a.salu('s_add_u32', S(S_T2), S(S_T0), 63); a.salu('s_mul_hi_u32', S(S_T2), S(S_T2), hex((2**32 + 175)//176))
    a.salu('s_lshl_b32', S(S_T1), S(S_T1), 7); a.salu('s_lshl_b32', S(S_T2), S(S_T2), 7)
    VF = VT2+4
    a.valu('v_mov_b32', t0, S(S_T1)); a.valu('v_mov_b32', t1, S(S_T2))
    a.salu('s_mov_b32', S(S_M), '0xffff0000'); a.salu('s_mov_b32', S(S_M+1), 0)
    a.valu('v_cndmask_b32', V(VF), t0, t1, S(S_M,2))
    a.salu('s_mul_hi_u32', S(S_T1), S(S_T0), hex((2**32 + 191)//192)); a.salu('s_add_u32', S(S_T2), S(S_T0), 63); a.salu('s_mul_hi_u32', S(S_T2), S(S_T2), hex((2**32 + 191)//192))
    a.salu('s_lshl_b32', S(S_T1), S(S_T1), 7); a.salu('s_lshl_b32', S(S_T2), S(S_T2), 7)
    a.salu('s_add_u32', S(S_T1), S(S_T1), 4096); a.salu('s_add_u32', S(S_T2), S(S_T2), 4096)
    a.valu('v_mov_b32', t0, S(S_T1)); a.valu('v_mov_b32', t1, S(S_T2))
    a.salu('s_mov_b32', S(S_M), 0); a.salu('s_mov_b32', S(S_M+1), '0x0000ffff')
    a.valu('v_cndmask_b32', V(VF), V(VF), t0, S(S_M,2))
    a.salu('s_mov_b32', S(S_M+1), '0xffff0000')
    a.valu('v_cndmask_b32', V(VF), V(VF), t1, S(S_M,2))
    a.valu('v_and_b32', t0, 15, l); a.valu('v_lshl_add_u32', V(VF), t0, 2, V(VF)); a.valu('v_add_u32', V(VF), WS_FH, V(VF))
    S_HB = S_XM0; S_OB = S_WM0
    a.salu('s_mul_i32', S(S_HB), S(S_TB), 4*56); a.salu('s_mul_i32', S(S_T0), S(S_WAVE), 14); a.salu('s_add_u32', S(S_HB), S(S_HB), S(S_T0)); a.salu('s_lshl_b32', S(S_HB), S(S_HB), 10)
    a.salu('s_lshl_b32', S(S_OB), S(S_TB), 6); a.salu('s_lshl_b32', S(S_T0), S(S_WAVE), 2); a.salu('s_add_u32', S(S_OB), S(S_OB), S(S_T0)); a.salu('s_lshl_b32', S(S_OB), S(S_OB), 10); a.salu('s_add_u32', S(S_OB), S(S_OB), WS_O)
    VA4 = [VAO, VT2+8, VT2+9, VT2+10]; VO4 = [VAO, VT2+11, VT2+12, VT2+13]
    for tt in range(1, 4):
        a.valu('v_add_u32', V(VA4[tt]), tt*56*1024, V(VAO)); a.valu('v_add_u32', V(VO4[tt]), tt*16*1024, V(VAO))
    a.salu('s_mul_i32', S(S_T0), S(S_WAVE), 7); a.salu('s_lshr_b32', S(S_T0), S(S_T0), 1); a.salu('s_lshl_b32', S(S_T0), '0x000f000f', S(S_T0))
    a.salu('s_mov_b32', S(S_M), S(S_T0)); a.salu('s_mov_b32', S(S_M+1), 0)
    VP = VT2+5
    poll = lambda: a.buf_load('buffer_load_dword', V(VP), V(VF), S(S_WS,4), flags='sc1', tag='poll')
    spin_until(a, poll, V(VP), 1, S_M, "hpoll")
    st(8)
    DA = c.DA
    def load_a(ch):
        ops = []
        for tt in range(4):
            def f(tt=tt):
                d = Ag(AA + (ch % DA)*16 + 4*tt, 4)
                if ch < 14:
                    if ch % 4 == 0 and tt == 0: a.salu('s_add_u32', S(S_XOFF), S(S_HB), (ch//4)*4096)
                    a.buf_load('buffer_load_dwordx4', d, V(VA4[tt]), S(S_WS,4), S(S_XOFF), off=1024*(ch % 4), flags='sc1')
                else:
                    a.buf_load('buffer_load_dwordx4', d, V(VO4[tt]), S(S_WS,4), S(S_OB), off=1024*(ch - 14), flags='sc1')
            ops.append(f)
        return ops
    def read_w(ch):
        ops = []
        for ct in range(4):
            for jj in range(2):
                ops.append(lambda ct=ct, jj=jj: a.ds_read('ds_read_b64_tr_b16', Ag(AWF + 16*(ch & 1) + 4*ct + 2*jj, 2), V(VWR+ct), (ch % NSLOT)*4096 + 2048*jj))
        return ops
    def o_ready():
        a.salu('s_mov_b32', S(S_M), 0); a.salu('s_mov_b32', S(S_M+1), '0x00ff00ff')
        spin_until(a, poll, V(VP), 1, S_M, "opoll", preloaded=True)
        a.salu('s_lshl_b32', S(S_T0), S(S_TB), 8); a.salu('s_add_u32', S(S_T0), S(S_T0), WS_G)
        a.valu('v_and_b32', t0, 15, l); a.valu('v_lshlrev_b32', t0, 2, t0)
        for tt in range(4): a.buf_load('buffer_load_dword', V(VG+tt), t0, S(S_WS,4), S(S_T0), off=64*tt, flags='sc1')
    for ch in range(DA):
        for f in load_a(ch): f()
    a.wait_vm_tag(('p2w', 0))
    for f in read_w(0): f()
    for ch in range(NCH):
        side = {m: [] for m in range(16)}
        if ch + 1 < NCH:
            side[4].append(lambda ch=ch: a.wait_vm_tag(('p2w', ch+1)))
            for k, f in enumerate(read_w(ch+1)): side[4+k].append(f)
        vm_ops = []
        if ch + NSLOT < NCH: vm_ops += [('late', f) for f in common.p2_dma([ch + NSLOT])]
        na = ch - 1 + DA
        if ch >= 1 and na < NCH:
            if na == 14: side[0].append(o_ready)
            vm_ops = [('a', f) for f in load_a(na)] + vm_ops
        if ch == c.OPOLL_AT: side[1].append(poll)
        k0 = 0 if (vm_ops and vm_ops[0][0] == 'a') else 2
        for k, (kind, f) in enumerate(vm_ops): side[1 + 2*(k + k0)].append(f)
        base = BACC if ch < 14 else AACC
        for m in range(16):
            for f in side[m]: f()
            tt, ct = m >> 2, m & 3
            a.mfma16(bacc(base, tt, ct), Ag(AWF + 16*(ch & 1) + 4*ct, 4), Ag(AA + (ch % DA)*16 + 4*tt, 4), 0 if ch in (0, 14) else None)
    a.wait_lgkm(0); a.barrier()
    VX = VT2+8
    a.valu('v_lshlrev_b32', V(VX), 4, l)
    a.salu('s_lshl_b32', S(S_T0), S(S_WAVE), 10); a.valu('v_add_u32', V(VX+1), S(S_T0), V(VX))
    for tt in range(4):
        for k in range(0, 16, 2):
            a.valu('v_pk_add_f32', V(AACC+16*tt+k,2), V(AACC+16*tt+k,2), V(BACC+16*tt+k,2), extra='neg_lo:[0,1] neg_hi:[0,1]')
            a.valu('v_pk_fma_f32', V(BACC+16*tt+k,2), V(AACC+16*tt+k,2), V(VG+(tt & 2),2), V(BACC+16*tt+k,2),
                   extra='op_sel:[0,%d,0] op_sel_hi:[1,%d,1]' % (tt & 1, tt & 1))
        for ct in range(4):
            a.ds_write('ds_write_b128', V(VX+1), bacc(BACC, tt, ct), tt*16384 + ct*4096)
    a.wait_lgkm(0); a.barrier()
    a.salu('s_lshl_b32', S(S_T0), S(S_WAVE), 14); a.valu('v_add_u32', V(VX), S(S_T0), V(VX))
    for ct in range(4):
        for sw in range(4): a.ds_read('ds_read_b128', V(16*ct + 4*sw, 4), V(VX), ct*4096 + sw*1024)
    O = 64
    for ct in range(4):
        b = 16*ct
        for k in (0, 2): a.valu('v_pk_add_f32', V(b+k,2), V(b+k,2), V(b+4+k,2))
        for k in (0, 2): a.valu('v_pk_add_f32', V(b+8+k,2), V(b+8+k,2), V(b+12+k,2))
        for k in (0, 2): a.valu('v_pk_add_f32', V(b+k,2), V(b+k,2), V(b+8+k,2))
        for k in (0, 2): a.valu('v_cvt_pk_bf16_f32', V(O+2*ct+k//2), V(b+k), V(b+k+1))
    for k in range(2):
        a.valu('v_permlane32_swap_b32', V(O+0+k), V(O+4+k)); a.valu('v_permlane32_swap_b32', V(O+2+k), V(O+6+k))
    for k in range(2):
        a.valu('v_permlane16_swap_b32', V(O+0+k), V(O+2+k)); a.valu('v_permlane16_swap_b32', V(O+4+k), V(O+6+k))
    a.salu('s_lshl_b32', S(S_T0), S(S_TB), 2); a.salu('s_add_u32', S(S_T0), S(S_T0), S(S_WAVE)); a.salu('s_lshl_b32', S(S_T0), S(S_T0), 14)
    a.salu('s_lshl_b32', S(S_T1), S(S_CB), 7); a.salu('s_add_u32', S(S_T0), S(S_T0), S(S_T1))
    a.valu('v_and_b32', t0, 15, l); a.valu('v_lshlrev_b32', t0, 10, t0); a.valu('v_lshrrev_b32', t1, 4, l); a.valu('v_lshl_add_u32', t0, t1, 5, t0)
    a.buf_store('buffer_store_dwordx4', V(O,4), t0, S(S_OUT,4), S(S_T0))
    a.buf_store('buffer_store_dwordx4', V(O+4,4), t0, S(S_OUT,4), S(S_T0), off=16)
```

```python
from defs import *

XSLOT = 24576; WBASE = 98304; WSLOT = 16384; SCR = WBASE + 3*WSLOT
KAc = 0; VAc = 48; KV = 96; WP = 128; Y = 136; KB = 192; B0 = 176; B1 = 184; PH = 192; TT = 208
PQ = 48
VXD = 224
VWD = 230
VQD = 234
VXR = 168
VKR = 248; VVR = 249; VQR = 250; VTMP = 251
AFR = 0
APT = 64
AWP = 80
S_NV = 3
S_FK = S_T3

def xfr(b, u): return Ag(AFR + 20*b + 4*u, 4)
def wfr(b, n): return Ag(AFR + 20*b + 12 + 4*n, 4)

def setup_dma(a):
    t0, t1, t2, t3, lane = V(TT), V(TT+1), V(TT+2), V(TT+3), V(V_LANE)
    a.salu('s_and_b32', S(S_HP), S(S_WAVE), 1); a.salu('s_lshr_b32', S(S_RH), S(S_WAVE), 1)
    a.salu('s_mul_i32', S(S_T0), S(S_RB), 192); a.salu('s_mul_i32', S(S_T1), S(S_WAVE), 48); a.salu('s_add_u32', S(S_T0), S(S_T0), S(S_T1))
    a.valu('v_lshrrev_b32', t0, 3, lane)
    a.valu('v_lshrrev_b32', t1, 4, lane)
    a.valu('v_and_b32', t2, 7, lane)
    a.valu('v_xor_b32', t1, t1, t2)
    a.valu('v_add_u32', t0, S(S_T0), t0)
    a.valu('v_lshlrev_b32', t0, 10, t0)
    a.valu('v_xor_b32', t2, 4, t1)
    for i in range(6):
        a.valu('v_lshl_add_u32', V(VXD+i), (t2 if i & 1 else t1), 4, t0)
        if i: a.valu('v_add_u32', V(VXD+i), 8192*i - 1024*(i % 4), V(VXD+i))
    a.salu('s_mul_i32', S(S_XM0), S(S_WAVE), 48*128)
    a.salu('s_lshl_b32', S(S_T0), S(S_WAVE), 4)
    a.salu('s_lshl_b32', S(S_T1), S(S_CG), 7)
    a.salu('s_mov_b32', S(S_T2), 3072)
    a.valu('v_lshrrev_b32', t0, 4, lane)
    a.valu('v_and_b32', t1, 15, lane)
    a.valu('v_lshlrev_b32', t2, 2, t0)
    a.valu('v_xor_b32', t1, t1, t2)
    a.valu('v_lshrrev_b32', t2, 3, t1)
    a.valu('v_and_b32', t1, 7, t1)
    a.valu('v_lshlrev_b32', t1, 4, t1)
    a.valu('v_lshl_add_u32', t1, t2, 10, t1)
    a.valu('v_add_u32', t0, S(S_T0), t0)
    a.valu('v_mul_lo_u32', t0, t0, S(S_T2))
    a.valu('v_add3_u32', t0, t0, t1, S(S_T1))
    for i in range(4):
        a.valu('v_add_u32', V(VWD+i), 1024 + i*(4*3072 - 1024), t0)
    a.salu('s_lshl_b32', S(S_WM0), S(S_WAVE), 12); a.salu('s_add_u32', S(S_WM0), S(S_WM0), WBASE)

def setup_rest(a):
    t0, t1, t2, t3, lane = V(TT), V(TT+1), V(TT+2), V(TT+3), V(V_LANE)
    t4, t5 = V(TT+4), V(TT+5)
    a.salu('s_lshl_b32', S(S_T0), S(S_WAVE), 4)
    a.salu('s_lshl_b32', S(S_T1), S(S_CG), 7)
    a.salu('s_mov_b32', S(S_T2), 3072)
    a.valu('v_lshrrev_b32', t0, 3, lane)
    a.valu('v_bfe_u32', t1, lane, 4, 1)
    a.valu('v_lshlrev_b32', t1, 2, t1)
    a.valu('v_and_b32', t2, 7, lane)
    a.valu('v_xor_b32', t1, t1, t2)
    a.valu('v_add_u32', t0, S(S_T0), t0)
    a.valu('v_mul_lo_u32', t0, t0, S(S_T2))
    a.valu('v_lshl_add_u32', t0, t1, 4, t0)
    a.valu('v_add_u32', V(VQD), S(S_T1), t0)
    a.valu('v_add_u32', V(VQD+1), 8*3072 - 1024, V(VQD))
    a.valu('v_and_b32', t0, 31, lane)
    a.valu('v_lshrrev_b32', t1, 5, lane)
    a.valu('v_bfe_u32', t2, lane, 1, 3)
    a.valu('v_xor_b32', t2, t2, t1)
    a.salu('s_mul_i32', S(S_T0), S(S_RH), 96*128)
    a.valu('v_lshlrev_b32', t0, 7, t0)
    a.valu('v_add_u32', t0, S(S_T0), t0)
    for ks in range(4):
        a.valu('v_xor_b32', t3, 2*ks, t2)
        a.valu('v_lshl_add_u32', V(VXR+2*ks), t3, 4, t0)
        a.valu('v_add_u32', V(VXR+2*ks+1), 65536, V(VXR+2*ks))
    a.valu('v_bfe_u32', t0, lane, 2, 2)
    a.valu('v_lshl_add_u32', t1, t1, 3, t0)
    a.valu('v_bfe_u32', t2, lane, 4, 1)
    a.valu('v_lshlrev_b32', t2, 1, t2)
    a.salu('s_lshl_b32', S(S_T0), S(S_HP), 2)
    a.valu('v_add_u32', t2, S(S_T0), t2)
    a.valu('v_bfe_u32', t3, lane, 1, 1)
    a.valu('v_and_b32', t4, 1, lane)
    a.valu('v_add_u32', t5, t2, t3)
    a.valu('v_lshlrev_b32', V(VTMP), 2, t0)
    a.valu('v_xor_b32', t5, t5, V(VTMP))
    a.valu('v_lshlrev_b32', t5, 4, t5)
    a.valu('v_lshl_add_u32', t5, t4, 3, t5)
    a.valu('v_lshl_add_u32', t5, t1, 8, t5)
    a.valu('v_add_u32', V(VKR), WBASE, t5)
    a.valu('v_add3_u32', t5, t2, t4, 8)
    a.valu('v_xor_b32', t5, t5, V(VTMP))
    a.valu('v_lshlrev_b32', t5, 4, t5)
    a.valu('v_lshl_add_u32', t5, t3, 3, t5)
    a.valu('v_lshl_add_u32', t5, t1, 8, t5)
    a.valu('v_add_u32', V(VVR), WBASE, t5)
    a.valu('v_add_u32', t5, t2, t3)
    a.valu('v_lshrrev_b32', V(VTMP), 1, t0)
    a.valu('v_lshlrev_b32', V(VTMP), 2, V(VTMP))
    a.valu('v_xor_b32', t5, t5, V(VTMP))
    a.valu('v_lshlrev_b32', t5, 4, t5)
    a.valu('v_lshl_add_u32', t5, t4, 3, t5)
    a.valu('v_lshl_add_u32', t5, t1, 7, t5)
    a.valu('v_add_u32', V(VQR), WBASE, t5)
    for k in range(16): a.valu('v_mov_b32', V(B0+k), '0x3f803f80')
    a.salu('s_mov_b32', S(S_C0), hex(f32bits(LOG2E))); a.salu('s_mov_b32', S(S_C0+1), hex(f32bits(-LOG2E)))
    a.salu('s_mul_i32', S(S_T0), S(S_RB), 6); a.salu('s_mul_i32', S(S_T1), S(S_RH), 3); a.salu('s_add_u32', S(S_T0), S(S_T0), S(S_T1))
    a.salu('s_sub_u32', S(S_NV), 64, S(S_T0))

def dma_x(a, ch, slot, tag):
    def mk(i):
        def f():
            if i % 4 == 0: a.salu('s_add_u32', 'm0', S(S_XM0), slot*XSLOT + 1024*i)
            if i == 0: a.salu('s_mov_b32', S(S_XOFF), ch*128)
            a.dma(V(VXD+i), S(S_XSRD,4), S(S_XOFF), off=1024*(i % 4), tag=tag)
        return f
    return [mk(i) for i in range(6)]
def dma_w(a, ch):
    def mk(i):
        def f():
            if i == 0:
                a.salu('s_add_u32', 'm0', S(S_WM0), (ch % 4)*WSLOT)
                a.salu('s_mov_b32', S(S_WOFF), ch*64*3072)
            a.dma(V(VWD+i), S(S_WSRD,4), S(S_WOFF), off=1024*i, tag=('w', ch))
        return f
    return [mk(i) for i in range(4)]
def dma_q(a, j):
    ch = (4 + j) % 8
    def mk(i):
        def f():
            if i == 0:
                a.salu('s_lshl_b32', S(S_T0), S(S_WAVE), 11)
                a.salu('s_add_u32', 'm0', S(S_T0), WBASE + 8192*j)
                a.salu('s_mov_b32', S(S_WOFF), ch*64*3072)
            a.dma(V(VQD+i), S(S_WSRD,4), S(S_WOFF), off=1024*i, tag=('q', j))
        return f
    return [mk(i) for i in range(2)]

def rd_x(a, slot, ks, u, b):
    off = slot*XSLOT + 4096*u
    def f():
        r, imm = split_off(VXR + 2*ks, off)
        a.ds_read('ds_read_b128', xfr(b, u), r, imm)
    return f
def rd_w(a, reg, off, b, n):
    ops = []
    for jj in range(2):
        def f(jj=jj):
            a.ds_read('ds_read_b64_tr_b16', Ag(AFR + 20*b + 12 + 4*n + 2*jj, 2), V(reg), off[jj])
        ops.append(f)
    return ops

GX = 136
def gate_loads(a):
    srd(a, S_AUX, P_GW, 1024)
    t0 = V(TT)
    a.valu('v_lshlrev_b32', t0, 4, V(V_LANE))
    a.buf_load('buffer_load_dwordx4', V(GX+24, 4), t0, S(S_AUX,4), tag='g')
    a.salu('s_mul_i32', S(S_T0), S(S_RB), 192); a.salu('s_mul_i32', S(S_T1), S(S_CG), 24); a.salu('s_add_u32', S(S_T0), S(S_T0), S(S_T1))
    a.salu('s_mul_i32', S(S_T1), S(S_WAVE), 6); a.salu('s_add_u32', S(S_T0), S(S_T0), S(S_T1))
    a.salu('s_lshl_b32', S(S_T1), S(S_T0), 10)
    a.valu('v_add_u32', t0, S(S_T1), t0)
    a.valu('v_add_u32', V(TT+1), 4096, t0)
    for r in range(6):
        a.buf_load('buffer_load_dwordx4', V(GX+4*r, 4), (t0 if r < 4 else V(TT+1)), S(S_XSRD,4), off=1024*(r % 4), tag='g')
    l = V(V_LANE); t1, t2 = V(TT+2), V(TT+3)
    a.valu('v_bfe_u32', t1, l, 4, 1); a.valu('v_lshlrev_b32', t1, 1, t1)
    a.valu('v_and_b32', t2, 1, l); a.valu('v_lshlrev_b32', t2, 2, t2)
    a.valu('v_add_u32', t1, t1, t2)
    a.valu('v_lshrrev_b32', t2, 5, l)
    a.valu('v_add3_u32', t1, t1, t2, S(S_T0))
    a.valu('v_lshlrev_b32', t1, 2, t1)
    a.valu('v_add_u32', V(GX+28), WS_G, t1)
    srd(a, S_AUX, P_WPHI, 32*512)
    a.salu('s_lshl_b32', S(S_T0), S(S_CG), 11); a.salu('s_lshl_b32', S(S_T1), S(S_HP), 10); a.salu('s_add_u32', S(S_T0), S(S_T0), S(S_T1))
    a.valu('v_lshlrev_b32', V(TT+4), 4, l)
    a.buf_load('buffer_load_dwordx4', Ag(AWP, 4), V(TT+4), S(S_AUX,4), S(S_T0), tag='g')
def gate_ops(a):
    ops = []; A = ops.append
    p = [TT + r for r in range(6)]
    for k in range(4):
        for r in range(6):
            A(lambda r=r, k=k: a.valu('v_dot2_f32_bf16', V(p[r]), V(GX+4*r+k), V(GX+24+k), (0 if k == 0 else V(p[r]))))
    for r in (0, 2, 4): A(lambda r=r: a.valu('v_permlane32_swap_b32', V(p[r]), V(p[r+1])))
    for r in (0, 2, 4): A(lambda r=r: a.valu('v_add_f32', V(p[r]), V(p[r]), V(p[r+1])))
    A(lambda: a.valu('v_mov_b32', V(p[5]), V(p[4])))
    A(lambda: a.valu('v_permlane16_swap_b32', V(p[0]), V(p[2])))
    A(lambda: a.valu('v_permlane16_swap_b32', V(p[4]), V(p[5])))
    A(lambda: a.valu('v_add_f32', V(p[0]), V(p[0]), V(p[2])))
    A(lambda: a.valu('v_add_f32', V(p[4]), V(p[4]), V(p[5])))
    for sh in (8, 4, 2, 1):
        for r in (0, 4):
            A(lambda r=r, sh=sh: a.valu('v_add_f32_dpp', V(p[r]), V(p[r]), V(p[r]), extra=f'row_ror:{sh} row_mask:0xf bank_mask:0xf'))
    def sel():
        a.salu('s_mov_b32', S(S_M), '0x00020002'); a.salu('s_mov_b32', S(S_M+1), '0x00020002')
        a.valu('v_cndmask_b32', V(p[0]), V(p[0]), V(p[4]), S(S_M,2))
    A(sel)
    A(lambda: a.valu('v_mul_f32', V(p[0]), S(S_C0+1), V(p[0])))
    A(lambda: a.valu('v_exp_f32', V(p[0]), V(p[0])))
    A(lambda: a.valu('v_add_f32', V(p[0]), '1.0', V(p[0])))
    A(lambda: a.valu('v_rcp_f32', V(p[0]), V(p[0])))
    def st():
        set_exec(a, '0x00010003', '0x00010003')
        a.buf_store('buffer_store_dword', V(p[0]), V(GX+28), S(S_WS,4), flags='sc1', tag='gst')
        set_exec(a, -1, -1)
    A(st)
    return ops

def softmax_pair(a, src, dst):
    for k in range(8): a.valu('v_cvt_pk_bf16_f32', V(KB+k), V(src+2*k), V(src+2*k+1))
    for h in range(2): a.mfma32(V(Y+16*h,16), V(WP+4*h,4), V(KB+4*h,4), 0)
    M = [TT, TT+2]; Sm = [TT+4, TT+6]
    for h in range(2): a.valu('v_max3_f32', V(M[h]), V(Y+16*h), V(Y+16*h+1), V(Y+16*h+2))
    for k in range(3, 15, 2):
        for h in range(2): a.valu('v_max3_f32', V(M[h]), V(M[h]), V(Y+16*h+k), V(Y+16*h+k+1))
    for h in range(2): a.valu('v_max_f32', V(M[h]), V(M[h]), V(Y+16*h+15))
    for h in range(2): a.valu('v_mul_f32', V(M[h]), S(S_C0+1), V(M[h]))
    for k in range(0, 16, 2):
        for h in range(2): a.valu('v_pk_fma_f32', V(Y+16*h+k,2), V(Y+16*h+k,2), S(S_C0,2), V(M[h],2), extra='op_sel_hi:[1,0,0]')
        for h in range(2):
            a.valu('v_exp_f32', V(Y+16*h+k), V(Y+16*h+k)); a.valu('v_exp_f32', V(Y+16*h+k+1), V(Y+16*h+k+1))
    for h in range(2): a.valu('v_pk_add_f32', V(Sm[h],2), V(Y+16*h,2), V(Y+16*h+2,2))
    for k in range(4, 16, 2):
        for h in range(2): a.valu('v_pk_add_f32', V(Sm[h],2), V(Sm[h],2), V(Y+16*h+k,2))
    for h in range(2): a.valu('v_add_f32', V(Sm[h]), V(Sm[h]), V(Sm[h]+1))
    for h in range(2): a.valu('v_rcp_f32', V(Sm[h]), V(Sm[h]))
    for k in range(0, 16, 2):
        for h in range(2): a.valu('v_pk_mul_f32', V(Y+16*h+k,2), V(Y+16*h+k,2), V(Sm[h],2), extra='op_sel_hi:[1,0]')
        for h in range(2): a.valu('v_cvt_pk_bf16_f32', V(dst+8*h+k//2), V(Y+16*h+k), V(Y+16*h+k+1))

def swap_if_rh(a, r0, r1, n):
    skip = newlabel("nswap")
    a.nop(12)
    a.salu('s_cmp_eq_u32', S(S_RH), 0); a.branch(f"s_cbranch_scc1 {skip}")
    for k in range(n):
        a.emit(Ins(f"v_swap_b32 v{r0+k}, v{r1+k}", 'valu', rset(V(r0+k))|rset(V(r1+k)), rset(V(r0+k))|rset(V(r1+k)), op='v_swap_b32'))
    a.label(skip)
    a.nop(2)

def path(a, c, st, common):
    srd(a, S_XSRD, P_AX, 2048*1024); srd(a, S_WSRD, P_WQKV, 512*3072)
    setup_dma(a)
    a.salu('s_lshl_b32', S(S_FLAG), S(S_RB), 7); a.salu('s_lshl_b32', S(S_T0), S(S_CG), 2)
    a.salu('s_add_u32', S(S_FLAG), S(S_FLAG), S(S_T0)); a.salu('s_add_u32', S(S_FLAG), S(S_FLAG), WS_FO)
    a.salu('s_lshl_b32', S(S_FK), S(S_CG), 7); a.salu('s_lshl_b32', S(S_T0), S(S_RB), 2)
    a.salu('s_add_u32', S(S_FK), S(S_FK), S(S_T0)); a.salu('s_add_u32', S(S_FK), S(S_FK), WS_FK)
    common.clear_flags([S_FLAG, S_FK])
    NM = 24
    def free_at(bar): return (bar-1)*NM + 12 + 1
    q = []
    for ch in range(8):
        e = -1 if ch < 4 else free_at(ch - 3)
        q += [(f, e) for f in dma_x(a, ch, ch % 4, ('x', ch))] + [(f, e) for f in dma_w(a, ch)]
    for j in range(6): q += [(f, free_at(5 + j//2)) for f in dma_q(a, j)]
    for f, e in q[:c.NPRO_Q]: f()
    q = q[c.NPRO_Q:]
    gate_loads(a)
    setup_rest(a)
    common.p2_setup()
    a.wait_vm_tag([('x',0),('w',0)])
    a.barrier()
    st(1)
    common.after_first_wait()
    def reads1(step):
        ch, ks = step >> 2, step & 3; b = step % 3
        base = (ch % 4)*WSLOT + 16*ks*256
        ops = rd_w(a, VKR, [base, base + 1024], b, 0) + [rd_x(a, ch % 4, ks, 0, b)] + rd_w(a, VVR, [base, base + 1024], b, 1) + [rd_x(a, ch % 4, ks, u, b) for u in (1, 2)]
        return ops
    for s0 in range(2):
        for f in reads1(s0): f()
    gops = gate_ops(a)
    last = -100
    for step in range(32):
        b = step % 3
        side = {m: [] for m in range(6)}
        if step % 4 == 2 and step < 30:
            def bar(ch=(step >> 2) + 1):
                a.wait_vm_tag([('x', ch), ('w', ch)]); a.wait_lgkm(0); a.barrier()
            side[0].append(bar)
        if step + 2 < 32:
            r = reads1(step + 2)
            for k, f in enumerate(r): side[k // 2].append(f)
        for m in range(6):
            g = step*6 + m
            for f in side[m]: f()
            if q and g - last >= c.PQ and q[0][1] <= g:
                q.pop(0)[0](); last = g
            if step >= c.GATE_AT and gops:
                gops.pop(0)()
                if gops and m >= 4: gops.pop(0)()
            u = m >> 1
            if m & 1 == 0: a.mfma32(V(KAc+16*u,16), wfr(b, 0), xfr(b, u), 0 if step == 0 else None)
            else: a.mfma32(V(VAc+16*u,16), xfr(b, u), wfr(b, 1), 0 if step == 0 else None)
    for f, e in q: f()
    for f in gops: f()
    a.wait_lgkm(0); a.barrier()
    st(2)
    common.cleared_issue()
    l = V(V_LANE); t0, t1, t2, t3 = V(TT), V(TT+1), V(TT+2), V(TT+3)
    VSC = TT+8; VPW = TT+9; VPR = TT+10
    a.salu('s_lshl_b32', S(S_T0), S(S_WAVE), 12); a.salu('s_add_u32', S(S_T0), S(S_T0), SCR)
    a.valu('v_lshlrev_b32', t0, 4, l); a.valu('v_add_u32', V(VSC), S(S_T0), t0)
    a.ds_write('ds_write_b128', V(VSC), Ag(AWP,4))
    a.valu('v_bfe_u32', t0, l, 2, 2)
    a.valu('v_lshrrev_b32', t1, 5, l)
    a.valu('v_lshl_add_u32', t2, t1, 2, t0)
    a.valu('v_lshlrev_b32', t2, 5, t2)
    a.valu('v_bfe_u32', t3, l, 4, 1); a.valu('v_lshl_add_u32', t2, t3, 4, t2)
    a.valu('v_bfe_u32', t3, l, 1, 1); a.valu('v_lshl_add_u32', t2, t3, 3, t2)
    a.valu('v_add_u32', t2, S(S_T0), t2)
    a.wait_lgkm(0)
    for h in range(2):
        for jj in range(2): a.ds_read('ds_read_b64_tr_b16', V(WP+4*h+2*jj,2), t2, 512*h + 256*jj)
    a.valu('v_bfe_u32', t2, l, 1, 1); a.valu('v_lshlrev_b32', t2, 2, t2)
    a.valu('v_bfe_u32', t3, l, 2, 1); a.valu('v_lshl_or_b32', t2, t3, 1, t2)
    a.valu('v_and_b32', t3, 1, l); a.valu('v_or_b32', t2, t2, t3)
    a.valu('v_lshlrev_b32', t3, 1, t1); a.valu('v_xor_b32', t2, t2, t3)
    a.valu('v_lshlrev_b32', t2, 4, t2)
    a.valu('v_and_b32', t3, 31, l); a.valu('v_lshl_add_u32', t2, t3, 7, t2)
    a.valu('v_add_u32', V(VPW), S(S_T0), t2)
    VPWx = [VPW, TT+12, TT+13, TT+14]
    for k, x in ((1, 16), (2, 64), (3, 80)): a.valu('v_xor_b32', V(VPWx[k]), x, V(VPW))
    a.valu('v_lshrrev_b32', t2, 1, t0); a.valu('v_lshlrev_b32', t2, 2, t2)
    a.valu('v_lshl_or_b32', t2, t1, 1, t2); a.valu('v_and_b32', t3, 1, t0); a.valu('v_or_b32', t2, t2, t3)
    a.valu('v_and_b32', t3, 1, l); a.valu('v_lshlrev_b32', t3, 1, t3); a.valu('v_xor_b32', t2, t2, t3)
    a.valu('v_bfe_u32', t3, l, 4, 1); a.valu('v_xor_b32', t2, t2, t3)
    a.valu('v_lshlrev_b32', t2, 4, t2)
    a.valu('v_bfe_u32', t3, l, 1, 1); a.valu('v_lshl_add_u32', t2, t3, 3, t2)
    a.valu('v_lshl_add_u32', t3, t1, 2, t0); a.valu('v_lshl_add_u32', t2, t3, 7, t2)
    a.valu('v_add_u32', V(VPR), S(S_T0), t2); a.valu('v_xor_b32', V(VPR+1), 64, V(VPR))
    a.valu('v_bfe_u32', t2, l, 2, 1); a.valu('v_sub_u32', t2, 0, t2); a.valu('v_and_b32', t2, '0x80008000', t2)
    for k in range(8): a.valu('v_xor_b32', V(WP+k), V(WP+k), t2)
    a.wait_lgkm(0)
    for u in range(3):
        skip = newlabel("kskip")
        if u:
            a.salu('s_cmp_le_u32', S(S_NV), u); a.branch(f"s_cbranch_scc1 {skip}")
        softmax_pair(a, KAc + 16*u, PH)
        for h in range(2):
            for qq in range(2): a.ds_write('ds_write_b128', V(VPWx[2*h+qq]), V(PH+8*h+4*qq,4))
        set_exec(a, '0x0000ffff', '0x0000ffff')
        for k in range(8): a.valu('v_cvt_pk_bf16_f32', V(B0+k), V(VAc+16*u+2*k), V(VAc+16*u+2*k+1))
        set_exec(a, '0xffff0000', '0xffff0000')
        for k in range(8): a.valu('v_cvt_pk_bf16_f32', V(B1+k), V(VAc+16*u+2*k), V(VAc+16*u+2*k+1))
        set_exec(a, -1, -1)
        a.wait_lgkm(0)
        for th in range(2):
            for h in range(2):
                for jj in range(2):
                    a.ds_read('ds_read_b64_tr_b16', Ag(APT+8*h+4*th+2*jj,2), V(VPR+h), (16*th + 8*jj)*128)
        for th in range(2):
            for h in range(2):
                a.mfma32(V(KV+16*h,16), Ag(APT+8*h+4*th,4), V((B0, B1)[h]+4*th,4), 0 if (u == 0 and th == 0) else None)
        if u:
            a.nop(8)
            a.label(skip)
    common.cleared_check()
    swap_if_rh(a, KV, KV+16, 16)
    for qq in range(4): a.ds_write('ds_write_b128', V(VSC), V(KV+16+4*qq,4), 1024*qq)
    VKO = TT+15
    a.salu('s_lshl_b32', S(S_T0), S(S_RH), 4)
    a.valu('v_and_b32', t0, 31, l); a.valu('v_xor_b32', t0, S(S_T0), t0); a.valu('v_min_u32', t0, 16, t0)
    a.valu('v_lshrrev_b32', t1, 5, l); a.valu('v_mul_u32_u24', t1, 17, t1); a.valu('v_add_u32', t0, t0, t1)
    a.salu('s_lshl_b32', S(S_T0), S(S_CG), 2); a.salu('s_lshl_b32', S(S_T1), S(S_HP), 1)
    a.salu('s_add_u32', S(S_T0), S(S_T0), S(S_T1)); a.salu('s_add_u32', S(S_T0), S(S_T0), S(S_RH))
    a.salu('s_mul_i32', S(S_T0), S(S_T0), 11*2560); a.salu('s_add_u32', S(S_T0), S(S_T0), WS_KV)
    a.valu('v_lshlrev_b32', t0, 4, t0); a.valu('v_add_u32', V(VKO), S(S_T0), t0)
    a.valu('v_xor_b32', V(TT+11), 8192, V(VSC))
    a.wait_lgkm(0); a.barrier()
    for qq in range(4): a.ds_read('ds_read_b128', V(Y+4*qq,4), V(TT+11), 1024*qq)
    for k in range(0, 16, 2): a.valu('v_pk_add_f32', V(KV+k,2), V(KV+k,2), V(Y+k,2))
    a.salu('s_mov_b32', S(S_T1), '0xffff0001')
    a.salu('s_cmp_eq_u32', S(S_RH), 0)
    a.salu('s_cselect_b32', S(S_T1), '0x0001ffff', S(S_T1))
    a.salu('s_mul_i32', S(S_T0), S(S_RB), 2560)
    a.salu('s_mov_b32', 'exec_lo', S(S_T1)); a.salu('s_mov_b32', 'exec_hi', S(S_T1))
    for qq in range(4): a.buf_store('buffer_store_dwordx4', V(KV+4*qq,4), V(VKO), S(S_WS,4), S(S_T0), off=640*qq, flags='sc1', tag='kvst')
    set_exec(a, -1, -1)
    st(3)
    NM2 = 12
    def free2(bar): return (bar-1)*NM2 + 6 + 1
    q = [(f, -1) for f in dma_q(a, 6) + dma_q(a, 7)]
    for j in range(4): q += [(f, free2(j+1)) for f in dma_x(a, j, j, ('x2', j))]
    def reads2(step):
        j, ks = step >> 2, step & 3; b = step % 3
        base = 8192*j + 16*ks*128
        return rd_w(a, VQR, [base, base + 512], b, 0) + [rd_x(a, j % 4, ks, u, b) for u in range(3)]
    a.wait_vm_tag([('q', 0)]); a.wait_lgkm(0); a.barrier()
    for s0 in range(2):
        for f in reads2(s0): f()
    last = -100
    for step in range(32):
        b = step % 3
        side = {m: [] for m in range(3)}
        if step % 4 == 2 and step < 30:
            j = (step >> 2) + 1
            def bar(j=j):
                tags = [('q', j)] + ([('x2', j-4)] if j >= 4 else []) + (['kvst'] if j == c.KV_FLAG_AT else [])
                a.wait_vm_tag(tags); a.wait_lgkm(0); a.barrier()
                if j == c.KV_FLAG_AT: one_lane_store(a, S_FK, 1, 'flag')
            side[0].append(bar)
        if step + 2 < 32:
            r = reads2(step + 2)
            for k, f in enumerate(r): side[min(k // 2, 2)].append(f)
        for m in range(3):
            g = step*3 + m
            for f in side[m]: f()
            if q and g - last >= c.PQ2 and q[0][1] <= g:
                q.pop(0)[0](); last = g
            a.mfma32(V(KAc+16*m,16), wfr(b, 0), xfr(b, m), 0 if step == 0 else None)
    assert not q
    a.wait_lgkm(0); a.barrier()
    st(4)
    pre = common.p2_dma(range(c.P2PRE_Q))
    for u in range(3):
        n = -(-len(pre) // (3 - u))
        for f in pre[:n]: f()
        pre = pre[n:]
        softmax_pair(a, KAc + 16*u, PQ + 16*u)
    st(5)
    a.salu('s_lshl_b32', S(S_T0), S(S_CG), 7); a.salu('s_add_u32', S(S_T0), S(S_T0), WS_FK)
    a.valu('v_and_b32', t0, 15, l); a.valu('v_lshlrev_b32', t0, 2, t0)
    a.salu('s_mov_b32', S(S_M), '0x7ff'); a.salu('s_mov_b32', S(S_M+1), 0)
    spin_until(a, lambda: a.buf_load('buffer_load_dword', t1, t0, S(S_WS,4), S(S_T0), flags='sc1'), t1, 1, S_M, "kvpoll")
    st(6)
    land = list(range(0, 48, 4)) + list(range(96, 128, 4)) + list(range(136, 208, 4))
    SUM = land[:4]
    def gl(rb, qq, reg):
        if qq == 0: a.salu('s_mov_b32', S(S_T1), 2560*rb)
        a.buf_load('buffer_load_dwordx4', V(reg,4), V(VKO), S(S_WS,4), S(S_T1), off=640*qq, flags=c.LDF)
    free = land[4:]; where = {}
    todo = [(rb, qq) for rb in range(11) for qq in range(4)]
    issued = 0
    def issue(reg):
        nonlocal issued
        rb, qq = todo[issued]; where[(rb, qq)] = reg; gl(rb, qq, reg); issued += 1
    for qq in range(4): issue(SUM[qq])
    while free and issued + 4 <= len(todo) and len(free) >= 4:
        for qq in range(4): issue(free.pop(0))
    for rb in range(1, 11):
        for qq in range(4):
            r = where[(rb, qq)]
            for k in (0, 2): a.valu('v_pk_add_f32', V(SUM[qq]+k,2), V(SUM[qq]+k,2), V(r+k,2))
            free.append(r)
        if issued < len(todo):
            for qq in range(4): issue(free.pop(0))
    KA_ = 96
    for k in range(8): a.valu('v_cvt_pk_bf16_f32', V(KA_+k), V(2*k), V(2*k+1))
    a.salu('s_add_u32', S(S_T0), S(S_P2M0), 9*4096)
    a.valu('v_lshlrev_b32', t0, 4, l); a.valu('v_add_u32', t0, S(S_T0), t0)
    for qq in range(2): a.ds_write('ds_write_b128', t0, V(KA_+4*qq,4), 1024*qq)
    a.salu('s_xor_b32', S(S_T0), S(S_WAVE), 2); a.salu('s_mul_i32', S(S_T0), S(S_T0), 40960); a.salu('s_add_u32', S(S_T0), S(S_T0), 9*4096)
    a.valu('v_lshlrev_b32', t1, 4, l); a.valu('v_add_u32', t1, S(S_T0), t1)
    VOS = TT+4
    a.salu('s_mul_i32', S(S_T0), S(S_RB), 12); a.salu('s_mul_i32', S(S_T1), S(S_RH), 6); a.salu('s_add_u32', S(S_T0), S(S_T0), S(S_T1))
    a.salu('s_lshl_b32', S(S_T0), S(S_T0), 4); a.salu('s_lshl_b32', S(S_T1), S(S_CG), 1); a.salu('s_add_u32', S(S_T0), S(S_T0), S(S_T1))
    a.salu('s_add_u32', S(S_T0), S(S_T0), S(S_HP)); a.salu('s_lshl_b32', S(S_T0), S(S_T0), 10); a.salu('s_add_u32', S(S_T0), S(S_T0), WS_O)
    a.valu('v_bfe_u32', t2, l, 4, 1); a.valu('v_lshlrev_b32', t2, 14, t2)
    a.valu('v_lshrrev_b32', t3, 5, l); a.valu('v_lshl_add_u32', t2, t3, 8, t2)
    a.valu('v_and_b32', t3, 15, l); a.valu('v_lshl_add_u32', t2, t3, 4, t2)
    a.valu('v_add_u32', V(VOS), S(S_T0), t2)
    a.wait_lgkm(0); a.barrier()
    for qq in range(2): a.ds_read('ds_read_b128', V(KA_+8+4*qq,4), t1, 1024*qq)
    a.wait_lgkm(0)
    swap_if_rh(a, KA_, KA_+8, 8)
    a.salu('s_mov_b32', S(S_T2), hex(f32bits(1e-6)))
    for u in range(3):
        for uu in range(2):
            for h in range(2):
                a.mfma32(V(Y+16*h,16), V(KA_+8*h+4*uu,4), V(PQ+16*u+8*h+4*uu,4), 0 if uu == 0 else None)
        a.salu('s_mov_b32', S(S_T0), 32768*u)
        for h in range(2):
            num = Y + 16*h + 8*h; den = Y + 16*h + 8*(1-h); R_ = TT + 6 + 2*h - 0
            R_ = (TT+6, TT+12)[h]
            a.valu('v_add_f32', V(R_), S(S_T2), V(den))
            a.valu('v_rcp_f32', V(R_), V(R_))
            for k in range(0, 8, 2): a.valu('v_pk_mul_f32', V(num+k,2), V(num+k,2), V(R_,2), extra='op_sel_hi:[1,0]')
            o = PH + 8*(u & 1) + 4*h
            for k in range(4): a.valu('v_cvt_pk_bf16_f32', V(o+k), V(num+2*k), V(num+2*k+1))
            a.buf_store('buffer_store_dwordx4', V(o,4), V(VOS), S(S_WS,4), S(S_T0), off=512*h, flags='sc1', tag='ost')
    for f in common.p2_dma(range(c.P2PRE_Q, c.P2PRE_JOIN)): f()
    st(7)
    a.wait_vm_tag(['ost', 'gst'])
```

```python
import sys
from defs import *
import ffn, qkv, p2
KNAME = "gated_mix__linear_kernel_hedgehog__glu_gated_swiglu__prompt_kernel"
class Cfg:
    BAR_AT = 28; LA = 5; NPOOL = 7; NPRO = 14; P = 4
    NPRO_Q = 20; PQ = 2; PQ2 = 2; GATE_AT = 8; KV_FLAG_AT = 3
    P2PRE_FFN = 0; P2PRE_Q = 0; P2PRE_JOIN = 4
    DA = 6; OPOLL_AT = 6
    STAMPS = False; STAMP8 = False
def cfg(**kw): return type('C', (Cfg,), kw)

def gen(c):
    a = Asm(); st = Stamps(a, c.STAMPS); common = p2.Common(a, c)
    a.raw("; @launch grid=(256,1,1) block=(256,1,1) lds=163840")
    a.raw('.amdgcn_target "amdgcn-amd-amdhsa--gfx950"\n.text')
    a.raw(kernel_head(KNAME))
    a.salu('s_cmp_ge_u32', S(2), 256); a.branch("s_cbranch_scc1 L_end")
    st(0)
    a.sload('s_load_dwordx16', S(KA,16), S(0,2), 0)
    a.sload('s_load_dwordx8', S(KA+16,8), S(0,2), 64)
    a.valu('v_and_b32', V(V_LANE), 63, V(0))
    a.valu('v_lshrrev_b32', V(1), 6, V(0))
    a.valu('v_readfirstlane_b32', S(S_WAVE), V(1))
    X, J = S_T2, S_T3
    a.salu('s_and_b32', S(X), S(2), 7); a.salu('s_lshr_b32', S(J), S(2), 3)
    a.salu('s_lshl_b32', S(S_TB), S(X), 2); a.salu('s_lshr_b32', S(S_T0), S(J), 3); a.salu('s_add_u32', S(S_TB), S(S_TB), S(S_T0))
    a.salu('s_and_b32', S(S_CB), S(J), 7)
    a.salu('s_cmp_ge_u32', S(X), 6); a.branch("s_cbranch_scc1 L_qkv_a")
    a.salu('s_cmp_ge_u32', S(J), 28); a.branch("s_cbranch_scc1 L_qkv_b")
    a.salu('s_mul_hi_u32', S(S_RB), S(J), hex((2**32 + 6)//7))
    a.salu('s_mul_i32', S(S_T0), S(S_RB), 7); a.salu('s_sub_u32', S(S_CG), S(J), S(S_T0))
    a.salu('s_and_b32', S(S_T0), S(X), 1); a.salu('s_mul_i32', S(S_T0), S(S_T0), 7); a.salu('s_add_u32', S(S_CG), S(S_CG), S(S_T0))
    a.salu('s_lshr_b32', S(S_T0), S(X), 1); a.salu('s_lshl_b32', S(S_T0), S(S_T0), 2); a.salu('s_add_u32', S(S_RB), S(S_RB), S(S_T0))
    a.wait_lgkm(0)
    srd(a, S_WS, P_WSP, WS_SIZE + (2 << 20 if c.STAMPS else 0))
    hist0 = list(a.hist)
    ffn.path(a, c, st, common)
    a.branch("s_branch L_phase2")
    a.label("L_qkv_a")
    a.salu('s_sub_u32', S(S_RB), S(X), 6); a.salu('s_lshl_b32', S(S_RB), S(S_RB), 2); a.salu('s_lshr_b32', S(S_T0), S(J), 3); a.salu('s_add_u32', S(S_RB), S(S_RB), S(S_T0))
    a.salu('s_and_b32', S(S_CG), S(J), 7)
    a.branch("s_branch L_qkv")
    a.label("L_qkv_b")
    a.salu('s_lshr_b32', S(S_RB), S(X), 1); a.salu('s_add_u32', S(S_RB), S(S_RB), 8)
    a.salu('s_and_b32', S(S_CG), S(X), 1); a.salu('s_lshl_b32', S(S_CG), S(S_CG), 2); a.salu('s_add_u32', S(S_CG), S(S_CG), S(J)); a.salu('s_sub_u32', S(S_CG), S(S_CG), 28)
    a.label("L_qkv")
    a.vm = []; a.lgkm = []; a.hist = []
    a.force_wait(lgkm=0)
    srd(a, S_WS, P_WSP, WS_SIZE + (2 << 20 if c.STAMPS else 0))
    qkv.path(a, c, st, common)
    a.label("L_phase2")
    p2.phase2(a, c, st, common)
    if c.STAMPS:
        a.misc(f"s_memrealtime s[{S_T0+1}:{S_T0+2}]")
        a.force_wait(vm=0, lgkm=0)
        a.misc(f"s_memrealtime s[{S_C0}:{S_C0+1}]")
        a.force_wait(lgkm=0)
        for k in range(9): a.valu('v_mov_b32', V(k), S(S_STAMP+2*k))
        a.valu('v_mov_b32', V(9), S(S_T0+1)); a.valu('v_mov_b32', V(10), S(S_C0))
        a.salu('s_lshl_b32', S(S_T0), S(2), 2); a.salu('s_add_u32', S(S_T0), S(S_T0), S(S_WAVE)); a.salu('s_lshl_b32', S(S_T0), S(S_T0), 6); a.salu('s_add_u32', S(S_T0), S(S_T0), WS_STAMP)
        for k in range(3): a.buf_store('buffer_store_dwordx4', V(4*k,4), None, S(S_WS,4), S(S_T0), off=16*k)
    a.label("L_end"); a.raw("    s_endpgm")
    a.raw(KD.format(name=KNAME, nvgpr=512, accum=256))
    return a.text()

if __name__ == "__main__":
    out = sys.argv[1]
    kw = {}
    for x in sys.argv[2:]:
        k, v = x.split('='); kw[k] = int(v)
    open(out, 'w').write(gen(cfg(**kw)))
```

```python
from defs import *
NSLOT = 10; NCH = 18
BACC = 0; AACC = 64
AA = 0
AWF = 128
VAO = 128; VWR = 129; VG = 134; VT2 = 140
V_CLR = 251

class Common:
    def __init__(self, a, c): self.a = a; self.c = c
    def clear_flags(self, regs):
        a = self.a
        for r in regs: one_lane_store(a, r, 0, 'clr')
    def after_first_wait(self):
        a = self.a; skip = newlabel("cnt")
        a.salu('s_cmp_lg_u32', S(S_WAVE), 0); a.branch(f"s_cbranch_scc1 {skip}")
        a.valu('v_mov_b32', V(252), 1)
        set_exec(a, 1, 0)
        a.emit(Ins(f"buffer_atomic_add v252, off, s[{S_AUX}:{S_AUX+3}], 0 sc1", 'vmem', rset(V(252))|rset(S(S_AUX,4)), set(), op='atomic'))
        set_exec(a, -1, -1)
        a.label(skip)
    def cleared_load(self):
        self.a.buf_load('buffer_load_dword', V(V_CLR), None, S(S_AUX,4), flags='sc1', tag='clrchk')
    def cleared_issue(self): self.cleared_load()
    def cleared_check(self):
        a = self.a
        a.salu('s_mov_b64', S(S_M,2), 1)
        spin_until(a, self.cleared_load, V(V_CLR), '0x100', S_M, "clr", preloaded=True)
    def p2_setup(self):
        a = self.a; l = V(V_LANE); t0, t1, t2 = V(248), V(249), V(250)
        t0, t1, t2 = V(251), V(252), V(253)
        srd(a, S_W2, P_W2, 1792*1024); srd(a, S_WO, P_WO, 512*1024); srd(a, S_OUT, P_OUT, 2048*1024)
        srd(a, S_AUX, P_DBG, 256)
        a.salu('s_mul_i32', S(S_P2M0), S(S_WAVE), 40960)
        a.valu('v_bfe_u32', t0, l, 1, 2); a.valu('v_lshrrev_b32', t1, 4, l); a.valu('v_xor_b32', t0, t0, t1)
        a.valu('v_lshlrev_b32', t0, 5, t0); a.valu('v_and_b32', t1, 1, l); a.valu('v_lshl_add_u32', t0, t1, 4, t0)
        a.salu('s_lshl_b32', S(S_T0), S(S_CB), 7); a.valu('v_add_u32', t0, S(S_T0), t0)
        a.valu('v_lshrrev_b32', t1, 3, l)
        a.salu('s_mul_i32', S(S_T0), S(S_WAVE), 14*32*1024)
        a.valu('v_lshl_add_u32', t2, t1, 10, t0); a.valu('v_add_u32', V(V_P2W), S(S_T0), t2)
        for i in range(1, 4): a.valu('v_add_u32', V(V_P2W+i), i*(8192 - 1024), V(V_P2W))
        a.valu('v_lshrrev_b32', t2, 2, t1); a.valu('v_lshlrev_b32', t2, 3, t2); a.valu('v_and_b32', t1, 3, t1); a.valu('v_add_u32', t1, t1, t2)
        a.salu('s_mul_i32', S(S_T0), S(S_WAVE), 4*32*1024)
        a.valu('v_lshl_add_u32', t2, t1, 10, t0); a.valu('v_add_u32', V(V_P2W+4), S(S_T0), t2)
        for i in range(1, 4): a.valu('v_add_u32', V(V_P2W+4+i), (16*(i & 1) + 4*(i >> 1) - i)*1024, V(V_P2W+4))
    def p2_dma(self, chunks):
        a = self.a; ops = []
        for ch in chunks:
            for i in range(4):
                def f(ch=ch, i=i):
                    if i == 0:
                        a.salu('s_add_u32', 'm0', S(S_P2M0), (ch % NSLOT)*4096)
                        a.salu('s_mov_b32', S(S_WOFF), (ch if ch < 14 else ch - 14)*32768)
                    if ch < 14: a.dma(V(V_P2W+i), S(S_W2,4), S(S_WOFF), off=1024*i, tag=('p2w', ch))
                    else: a.dma(V(V_P2W+4+i), S(S_WO,4), S(S_WOFF), off=1024*i, tag=('p2w', ch))
                ops.append(f)
        return ops

def bacc(base, tt, ct): return V(base + 16*tt + 4*ct, 4)

def phase2(a, c, st, common):
    l = V(V_LANE); t0, t1, t2, t3 = V(VT2), V(VT2+1), V(VT2+2), V(VT2+3)
    a.lgkm = []; a.hist = []; a.nop(4)
    a.vm = [(set(), ('p2w', ch)) for ch in range(c.P2PRE_JOIN) for i in range(4)]
    a.barrier()
    one_lane_store(a, S_FLAG, 1, 'flag')
    st(8 if c.STAMP8 else 99) if False else None
    rest = common.p2_dma(range(c.P2PRE_JOIN, NSLOT))
    for f in rest: f()
    a.valu('v_lshlrev_b32', V(VAO), 4, l)
    a.valu('v_bfe_u32', t0, l, 2, 2); a.valu('v_lshrrev_b32', t1, 4, l)
    a.valu('v_lshl_add_u32', t2, t1, 2, t0)
    a.valu('v_bfe_u32', t3, t2, 1, 2)
    a.valu('v_lshlrev_b32', t2, 7, t2); a.valu('v_and_b32', t0, 3, l); a.valu('v_lshl_add_u32', t2, t0, 3, t2)
    a.valu('v_add_u32', t2, S(S_P2M0), t2)
    for ct in range(4):
        a.valu('v_xor_b32', t0, ct, t3); a.valu('v_lshl_add_u32', V(VWR+ct), t0, 5, t2)
    a.salu('s_lshl_b32', S(S_T0), S(S_TB), 6)
    a.salu('s_mul_hi_u32', S(S_T1), S(S_T0), hex((2**32 + 175)//176)); a.salu('s_add_u32', S(S_T2), S(S_T0), 63); a.salu('s_mul_hi_u32', S(S_T2), S(S_T2), hex((2**32 + 175)//176))
    a.salu('s_lshl_b32', S(S_T1), S(S_T1), 7); a.salu('s_lshl_b32', S(S_T2), S(S_T2), 7)
    VF = VT2+4
    a.valu('v_mov_b32', t0, S(S_T1)); a.valu('v_mov_b32', t1, S(S_T2))
    a.salu('s_mov_b32', S(S_M), '0xffff0000'); a.salu('s_mov_b32', S(S_M+1), 0)
    a.valu('v_cndmask_b32', V(VF), t0, t1, S(S_M,2))
    a.salu('s_mul_hi_u32', S(S_T1), S(S_T0), hex((2**32 + 191)//192)); a.salu('s_add_u32', S(S_T2), S(S_T0), 63); a.salu('s_mul_hi_u32', S(S_T2), S(S_T2), hex((2**32 + 191)//192))
    a.salu('s_lshl_b32', S(S_T1), S(S_T1), 7); a.salu('s_lshl_b32', S(S_T2), S(S_T2), 7)
    a.salu('s_add_u32', S(S_T1), S(S_T1), 4096); a.salu('s_add_u32', S(S_T2), S(S_T2), 4096)
    a.valu('v_mov_b32', t0, S(S_T1)); a.valu('v_mov_b32', t1, S(S_T2))
    a.salu('s_mov_b32', S(S_M), 0); a.salu('s_mov_b32', S(S_M+1), '0x0000ffff')
    a.valu('v_cndmask_b32', V(VF), V(VF), t0, S(S_M,2))
    a.salu('s_mov_b32', S(S_M+1), '0xffff0000')
    a.valu('v_cndmask_b32', V(VF), V(VF), t1, S(S_M,2))
    a.valu('v_and_b32', t0, 15, l); a.valu('v_lshl_add_u32', V(VF), t0, 2, V(VF)); a.valu('v_add_u32', V(VF), WS_FH, V(VF))
    S_HB = S_XM0; S_OB = S_WM0
    a.salu('s_mul_i32', S(S_HB), S(S_TB), 4*56); a.salu('s_mul_i32', S(S_T0), S(S_WAVE), 14); a.salu('s_add_u32', S(S_HB), S(S_HB), S(S_T0)); a.salu('s_lshl_b32', S(S_HB), S(S_HB), 10)
    a.salu('s_lshl_b32', S(S_OB), S(S_TB), 6); a.salu('s_lshl_b32', S(S_T0), S(S_WAVE), 2); a.salu('s_add_u32', S(S_OB), S(S_OB), S(S_T0)); a.salu('s_lshl_b32', S(S_OB), S(S_OB), 10); a.salu('s_add_u32', S(S_OB), S(S_OB), WS_O)
    VA4 = [VAO, VT2+8, VT2+9, VT2+10]; VO4 = [VAO, VT2+11, VT2+12, VT2+13]
    for tt in range(1, 4):
        a.valu('v_add_u32', V(VA4[tt]), tt*56*1024, V(VAO)); a.valu('v_add_u32', V(VO4[tt]), tt*16*1024, V(VAO))
    a.salu('s_mul_i32', S(S_T0), S(S_WAVE), 7); a.salu('s_lshr_b32', S(S_T0), S(S_T0), 1); a.salu('s_lshl_b32', S(S_T0), '0x000f000f', S(S_T0))
    a.salu('s_mov_b32', S(S_M), S(S_T0)); a.salu('s_mov_b32', S(S_M+1), 0)
    VP = VT2+5
    poll = lambda: a.buf_load('buffer_load_dword', V(VP), V(VF), S(S_WS,4), flags='sc1', tag='poll')
    spin_until(a, poll, V(VP), 1, S_M, "hpoll")
    st(8)
    DA = c.DA
    def load_a(ch):
        ops = []
        for tt in range(4):
            def f(tt=tt):
                d = Ag(AA + (ch % DA)*16 + 4*tt, 4)
                if ch < 14:
                    if ch % 4 == 0 and tt == 0: a.salu('s_add_u32', S(S_XOFF), S(S_HB), (ch//4)*4096)
                    a.buf_load('buffer_load_dwordx4', d, V(VA4[tt]), S(S_WS,4), S(S_XOFF), off=1024*(ch % 4), flags=c.LDF)
                else:
                    a.buf_load('buffer_load_dwordx4', d, V(VO4[tt]), S(S_WS,4), S(S_OB), off=1024*(ch - 14), flags=c.LDF)
            ops.append(f)
        return ops
    def read_w(ch):
        ops = []
        for ct in range(4):
            for jj in range(2):
                ops.append(lambda ct=ct, jj=jj: a.ds_read('ds_read_b64_tr_b16', Ag(AWF + 16*(ch & 1) + 4*ct + 2*jj, 2), V(VWR+ct), (ch % NSLOT)*4096 + 2048*jj))
        return ops
    def o_ready():
        a.salu('s_mov_b32', S(S_M), 0); a.salu('s_mov_b32', S(S_M+1), '0x00ff00ff')
        spin_until(a, poll, V(VP), 1, S_M, "opoll", preloaded=True)
        a.salu('s_lshl_b32', S(S_T0), S(S_TB), 8); a.salu('s_add_u32', S(S_T0), S(S_T0), WS_G)
        a.valu('v_and_b32', t0, 15, l); a.valu('v_lshlrev_b32', t0, 2, t0)
        for tt in range(4): a.buf_load('buffer_load_dword', V(VG+tt), t0, S(S_WS,4), S(S_T0), off=64*tt, flags=c.LDF)
    for ch in range(DA):
        for f in load_a(ch): f()
    a.wait_vm_tag(('p2w', 0))
    for f in read_w(0): f()
    for ch in range(NCH):
        side = {m: [] for m in range(16)}
        if ch + 1 < NCH:
            side[4].append(lambda ch=ch: a.wait_vm_tag(('p2w', ch+1)))
            for k, f in enumerate(read_w(ch+1)): side[4+k].append(f)
        vm_ops = []
        if ch + NSLOT < NCH: vm_ops += [('late', f) for f in common.p2_dma([ch + NSLOT])]
        na = ch - 1 + DA
        if ch >= 1 and na < NCH:
            if na == 14: side[0].append(o_ready)
            vm_ops = [('a', f) for f in load_a(na)] + vm_ops
        if ch == c.OPOLL_AT: side[1].append(poll)
        k0 = 0 if (vm_ops and vm_ops[0][0] == 'a') else 2
        for k, (kind, f) in enumerate(vm_ops): side[1 + 2*(k + k0)].append(f)
        base = BACC if ch < 14 else AACC
        for m in range(16):
            for f in side[m]: f()
            tt, ct = m >> 2, m & 3
            a.mfma16(bacc(base, tt, ct), Ag(AWF + 16*(ch & 1) + 4*ct, 4), Ag(AA + (ch % DA)*16 + 4*tt, 4), 0 if ch in (0, 14) else None)
    a.wait_lgkm(0); a.barrier()
    VX = VT2+8
    a.valu('v_lshlrev_b32', V(VX), 4, l)
    a.salu('s_lshl_b32', S(S_T0), S(S_WAVE), 10); a.valu('v_add_u32', V(VX+1), S(S_T0), V(VX))
    for tt in range(4):
        for k in range(0, 16, 2):
            a.valu('v_pk_add_f32', V(AACC+16*tt+k,2), V(AACC+16*tt+k,2), V(BACC+16*tt+k,2), extra='neg_lo:[0,1] neg_hi:[0,1]')
            a.valu('v_pk_fma_f32', V(BACC+16*tt+k,2), V(AACC+16*tt+k,2), V(VG+(tt & 2),2), V(BACC+16*tt+k,2),
                   extra='op_sel:[0,%d,0] op_sel_hi:[1,%d,1]' % (tt & 1, tt & 1))
        for ct in range(4):
            a.ds_write('ds_write_b128', V(VX+1), bacc(BACC, tt, ct), tt*16384 + ct*4096)
    a.wait_lgkm(0); a.barrier()
    a.salu('s_lshl_b32', S(S_T0), S(S_WAVE), 14); a.valu('v_add_u32', V(VX), S(S_T0), V(VX))
    for ct in range(4):
        for sw in range(4): a.ds_read('ds_read_b128', V(16*ct + 4*sw, 4), V(VX), ct*4096 + sw*1024)
    O = 64
    for ct in range(4):
        b = 16*ct
        for k in (0, 2): a.valu('v_pk_add_f32', V(b+k,2), V(b+k,2), V(b+4+k,2))
        for k in (0, 2): a.valu('v_pk_add_f32', V(b+8+k,2), V(b+8+k,2), V(b+12+k,2))
        for k in (0, 2): a.valu('v_pk_add_f32', V(b+k,2), V(b+k,2), V(b+8+k,2))
        for k in (0, 2): a.valu('v_cvt_pk_bf16_f32', V(O+2*ct+k//2), V(b+k), V(b+k+1))
    for k in range(2):
        a.valu('v_permlane32_swap_b32', V(O+0+k), V(O+4+k)); a.valu('v_permlane32_swap_b32', V(O+2+k), V(O+6+k))
    for k in range(2):
        a.valu('v_permlane16_swap_b32', V(O+0+k), V(O+2+k)); a.valu('v_permlane16_swap_b32', V(O+4+k), V(O+6+k))
    a.salu('s_lshl_b32', S(S_T0), S(S_TB), 2); a.salu('s_add_u32', S(S_T0), S(S_T0), S(S_WAVE)); a.salu('s_lshl_b32', S(S_T0), S(S_T0), 14)
    a.salu('s_lshl_b32', S(S_T1), S(S_CB), 7); a.salu('s_add_u32', S(S_T0), S(S_T0), S(S_T1))
    a.valu('v_and_b32', t0, 15, l); a.valu('v_lshlrev_b32', t0, 10, t0); a.valu('v_lshrrev_b32', t1, 4, l); a.valu('v_lshl_add_u32', t0, t1, 5, t0)
    a.buf_store('buffer_store_dwordx4', V(O,4), t0, S(S_OUT,4), S(S_T0))
    a.buf_store('buffer_store_dwordx4', V(O+4,4), t0, S(S_OUT,4), S(S_T0), off=16)
```

```python
import sys
from defs import *
import ffn, qkv, p2
KNAME = "gated_mix__linear_kernel_hedgehog__glu_gated_swiglu__prompt_kernel"
class Cfg:
    BAR_AT = 28; LA = 5; NPOOL = 7; NPRO = 14; P = 4
    NPRO_Q = 20; PQ = 2; PQ2 = 2; GATE_AT = 8; KV_FLAG_AT = 3
    P2PRE_FFN = 0; P2PRE_Q = 0; P2PRE_JOIN = 4
    DA = 6; OPOLL_AT = 6
    LDF = ''; PROBE = ''
    STAMPS = False; STAMP8 = False
def cfg(**kw): return type('C', (Cfg,), kw)

def gen(c):
    a = Asm(); st = Stamps(a, c.STAMPS); common = p2.Common(a, c)
    a.raw("; @launch grid=(256,1,1) block=(256,1,1) lds=163840")
    a.raw('.amdgcn_target "amdgcn-amd-amdhsa--gfx950"\n.text')
    a.raw(kernel_head(KNAME))
    a.salu('s_cmp_ge_u32', S(2), 256); a.branch("s_cbranch_scc1 L_end")
    st(0)
    a.sload('s_load_dwordx16', S(KA,16), S(0,2), 0)
    a.sload('s_load_dwordx8', S(KA+16,8), S(0,2), 64)
    a.valu('v_and_b32', V(V_LANE), 63, V(0))
    a.valu('v_lshrrev_b32', V(1), 6, V(0))
    a.valu('v_readfirstlane_b32', S(S_WAVE), V(1))
    X, J = S_T2, S_T3
    a.salu('s_and_b32', S(X), S(2), 7); a.salu('s_lshr_b32', S(J), S(2), 3)
    a.salu('s_lshl_b32', S(S_TB), S(X), 2); a.salu('s_lshr_b32', S(S_T0), S(J), 3); a.salu('s_add_u32', S(S_TB), S(S_TB), S(S_T0))
    a.salu('s_and_b32', S(S_CB), S(J), 7)
    a.salu('s_cmp_ge_u32', S(X), 6); a.branch("s_cbranch_scc1 L_qkv_a")
    a.salu('s_cmp_ge_u32', S(J), 28); a.branch("s_cbranch_scc1 L_qkv_b")
    a.salu('s_mul_hi_u32', S(S_RB), S(J), hex((2**32 + 6)//7))
    a.salu('s_mul_i32', S(S_T0), S(S_RB), 7); a.salu('s_sub_u32', S(S_CG), S(J), S(S_T0))
    a.salu('s_and_b32', S(S_T0), S(X), 1); a.salu('s_mul_i32', S(S_T0), S(S_T0), 7); a.salu('s_add_u32', S(S_CG), S(S_CG), S(S_T0))
    a.salu('s_lshr_b32', S(S_T0), S(X), 1); a.salu('s_lshl_b32', S(S_T0), S(S_T0), 2); a.salu('s_add_u32', S(S_RB), S(S_RB), S(S_T0))
    a.wait_lgkm(0)
    srd(a, S_WS, P_WSP, WS_SIZE + (2 << 20 if c.STAMPS else 0))
    hist0 = list(a.hist)
    ffn.path(a, c, st, common)
    a.branch("s_branch L_phase2")
    a.label("L_qkv_a")
    a.salu('s_sub_u32', S(S_RB), S(X), 6); a.salu('s_lshl_b32', S(S_RB), S(S_RB), 2); a.salu('s_lshr_b32', S(S_T0), S(J), 3); a.salu('s_add_u32', S(S_RB), S(S_RB), S(S_T0))
    a.salu('s_and_b32', S(S_CG), S(J), 7)
    a.branch("s_branch L_qkv")
    a.label("L_qkv_b")
    a.salu('s_lshr_b32', S(S_RB), S(X), 1); a.salu('s_add_u32', S(S_RB), S(S_RB), 8)
    a.salu('s_and_b32', S(S_CG), S(X), 1); a.salu('s_lshl_b32', S(S_CG), S(S_CG), 2); a.salu('s_add_u32', S(S_CG), S(S_CG), S(J)); a.salu('s_sub_u32', S(S_CG), S(S_CG), 28)
    a.label("L_qkv")
    a.vm = []; a.lgkm = []; a.hist = []
    a.force_wait(lgkm=0)
    srd(a, S_WS, P_WSP, WS_SIZE + (2 << 20 if c.STAMPS else 0))
    qkv.path(a, c, st, common)
    a.label("L_phase2")
    p2.phase2(a, c, st, common)
    if c.PROBE:
        wg, i, j, k = [int(x) for x in c.PROBE.split(',')]
        a.salu('s_cmp_lg_u32', S(2), wg); a.branch("s_cbranch_scc1 L_end")
        a.force_wait(vm=0, lgkm=0)
        a.misc(f"s_memrealtime s[{S_C0}:{S_C0+1}]")
        a.force_wait(lgkm=0)
        a.salu('s_sub_u32', S(S_T0), S(S_C0 if j == 10 else S_STAMP+2*j), S(S_STAMP+2*i))
        a.salu('s_mul_i32', S(S_T0), S(S_T0), k)
        a.salu('s_min_u32', S(S_T0), S(S_T0), 100000)
        a.label("L_probe")
        a.misc(f"s_memrealtime s[{S_M}:{S_M+1}]")
        a.force_wait(lgkm=0)
        a.salu('s_sub_u32', S(S_T1), S(S_M), S(S_C0))
        a.salu('s_cmp_lt_u32', S(S_T1), S(S_T0)); a.branch("s_cbranch_scc1 L_probe")
    elif c.STAMPS:
        a.misc(f"s_memrealtime s[{S_T0+1}:{S_T0+2}]")
        a.force_wait(vm=0, lgkm=0)
        a.misc(f"s_memrealtime s[{S_C0}:{S_C0+1}]")
        a.force_wait(lgkm=0)
        for k in range(9): a.valu('v_mov_b32', V(k), S(S_STAMP+2*k))
        a.valu('v_mov_b32', V(9), S(S_T0+1)); a.valu('v_mov_b32', V(10), S(S_C0))
        a.salu('s_lshl_b32', S(S_T0), S(2), 2); a.salu('s_add_u32', S(S_T0), S(S_T0), S(S_WAVE)); a.salu('s_lshl_b32', S(S_T0), S(S_T0), 6); a.salu('s_add_u32', S(S_T0), S(S_T0), WS_STAMP)
        for k in range(3): a.buf_store('buffer_store_dwordx4', V(4*k,4), None, S(S_WS,4), S(S_T0), off=16*k)
    a.label("L_end"); a.raw("    s_endpgm")
    a.raw(KD.format(name=KNAME, nvgpr=512, accum=256))
    return a.text()

if __name__ == "__main__":
    out = sys.argv[1]
    kw = {}
    for x in sys.argv[2:]:
        k, v = x.split('='); kw[k] = int(v) if v.lstrip('-').isdigit() else v
    open(out, 'w').write(gen(cfg(**kw)))
```
